```python
import torch

def _softmax(x, axis=-1):
    return torch.softmax(x, dim=axis)
def _gelu(x):
    return torch.nn.functional.gelu(x, approximate="tanh")
def _silu(x):
    return torch.nn.functional.silu(x)
def _sigmoid(x):
    return torch.sigmoid(x)
def _layernorm(x, axis=-1, eps=1e-5):
    m = x.mean(dim=axis, keepdim=True)
    v = x.var(dim=axis, keepdim=True, unbiased=False)
    return (x - m) / torch.sqrt(v + eps)
def _scatter_add(tgt, idx, src, axis=0):
    return tgt.clone().index_add_(axis, idx, src)
def _segment_sum(src, seg, n):
    out = torch.zeros((n,) + src.shape[1:], dtype=src.dtype)
    return out.index_add_(0, seg, src)
def _pad(x, pw):
    flat = tuple(v for pair in reversed(pw) for v in pair)
    return torch.nn.functional.pad(x, flat)

kernel_name = 'standalone__mha_block_cached__near_ridge'

def setup_inputs():

    _w = (lambda a: (lambda t: t.to(torch.bfloat16) if t.is_floating_point() else t)(torch.as_tensor(a)))
    B, Sq, D = 16, 128, 512
    H, Sk, Dh = 32, 1024, 128
    return {
        "x": _w((lambda *s: torch.randn(*s, dtype=torch.bfloat16) * 0.8)(B, Sq, D)),
        "k_cache": _w((lambda *s: torch.randn(*s, dtype=torch.bfloat16) * 0.8)(B, H, Sk, Dh)),
        "v_cache": _w((lambda *s: torch.randn(*s, dtype=torch.bfloat16) * 0.05)(B, H, Sk, Dh)),
        "wq": _w((lambda *s: torch.randn(*s, dtype=torch.bfloat16) * 0.8)(D, H * Dh) * (D ** -0.5)),
        "wo": _w((lambda *s: torch.randn(*s, dtype=torch.bfloat16) * 0.05)(H * Dh, D) * ((H * Dh) ** -0.5)),
    }

def reference(x, k_cache, v_cache, wq, wo):
    B, Sq, D = x.shape
    H, Dh = 32, 128
    q = (lambda x, *d: x.permute(*d))((x @ wq).reshape(B, Sq, H, Dh), 0, 2, 1, 3)
    scores = torch.einsum("bhqd,bhkd->bhqk", q, k_cache) * (Dh ** -0.5)
    p = _softmax(scores, axis=-1)
    o = torch.einsum("bhqk,bhkd->bhqd", p, v_cache)
    return (lambda x, *d: x.permute(*d))(o, 0, 2, 1, 3).reshape(B, Sq, H * Dh) @ wo
```

```python
import re
KN = "standalone__mha_block_cached__near_ridge_kernel"

def header(launch_lines):
    return "\n".join(launch_lines) + '\n.amdgcn_target "amdgcn-amd-amdhsa--gfx950"\n.text\n'

def kstart(name):
    return f".globl {name}\n.p2align 8\n.type {name},@function\n{name}:\n"

def kdesc(name, vgpr=256, sgpr=102, accum=256):
    return (f".p2align 6\n.amdhsa_kernel {name}\n  .amdhsa_next_free_vgpr {vgpr}\n  .amdhsa_next_free_sgpr {sgpr}\n"
            f"  .amdhsa_accum_offset {accum}\n  .amdhsa_group_segment_fixed_size 0\n  .amdhsa_kernarg_size 64\n"
            f"  .amdhsa_user_sgpr_count 2\n  .amdhsa_user_sgpr_kernarg_segment_ptr 1\n  .amdhsa_system_sgpr_workgroup_id_x 1\n"
            f".end_amdhsa_kernel\n")
RODATA = '.section .rodata,"a"\n'

_REG = re.compile(r"^(-|abs\(|-abs\(|\|)?([vas])(\d+)\)?\|?$")
_RNG = re.compile(r"^([vas])\[(\d+):(\d+)\]$")
def regs_of(tok):
    tok = tok.strip()
    m = _RNG.match(tok)
    if m:
        return [(m.group(1), i) for i in range(int(m.group(2)), int(m.group(3)) + 1)]
    m = _REG.match(tok)
    if m:
        return [(m.group(2), int(m.group(3)))]
    if tok == "vcc": return [("s", "vcc")]
    if tok in ("vcc_lo", "vcc_hi"): return [("s", "vcc")]
    if tok == "exec": return [("s", "exec")]
    if tok == "m0": return [("s", "m0")]
    return []

TRANS = ("v_exp_f32", "v_log_f32", "v_rcp_f32", "v_rsq_f32", "v_sqrt_f32", "v_sin_f32", "v_cos_f32")

class Ins:
    __slots__ = ("text", "op", "kind", "wr", "rd", "srcC", "srcAB", "passes", "label", "target", "lds", "nopn", "wide_store", "dst")
    def __init__(self, text):
        self.text = text
        t = text.split(";")[0].strip()
        self.label = None; self.target = None; self.wr = []; self.rd = []; self.srcC = []; self.srcAB = []
        self.passes = 0; self.lds = False; self.nopn = 1; self.wide_store = False; self.dst = []
        if not t or t.startswith("."):
            self.op = ""; self.kind = "none"; return
        if t.endswith(":"):
            self.op = ""; self.kind = "label"; self.label = t[:-1]; return
        parts = t.split(None, 1)
        op = self.op = parts[0]
        rest = parts[1] if len(parts) > 1 else ""
        toks = [x.strip() for x in rest.split(",")]
        last = toks[-1].split() if toks and toks[-1] else []
        mods = []
        if last:
            toks[-1] = last[0]; mods = last[1:]
        ops = [x for x in toks if x]
        base = re.sub(r"_e(32|64)$", "", op)
        if op.startswith("v_mfma"):
            self.kind = "mfma"
            self.passes = 8 if "32x32x16" in op else 4 if "16x16x32" in op else None
            assert self.passes, op
            self.wr = regs_of(ops[0]); self.srcAB = regs_of(ops[1]) + regs_of(ops[2]); self.srcC = regs_of(ops[3])
            self.rd = self.srcAB + self.srcC
        elif op.startswith("v_"):
            self.kind = "valu"
            if base.startswith("v_cmp"):
                self.wr = regs_of(ops[0]); self.rd = sum((regs_of(x) for x in ops[1:]), [])
                if base.startswith("v_cmpx"): self.wr += [("s", "exec")]
            elif base in ("v_readfirstlane_b32", "v_readlane_b32"):
                self.wr = regs_of(ops[0]); self.rd = sum((regs_of(x) for x in ops[1:]), [])
            elif base.startswith("v_permlane32_swap") or base.startswith("v_permlane16_swap"):
                self.wr = regs_of(ops[0]) + regs_of(ops[1]); self.rd = list(self.wr)
            elif base in ("v_add_co_u32", "v_sub_co_u32", "v_addc_co_u32", "v_subb_co_u32"):
                self.wr = regs_of(ops[0]) + regs_of(ops[1]); self.rd = sum((regs_of(x) for x in ops[2:]), [])
            elif base == "v_nop":
                pass
            else:
                self.wr = regs_of(ops[0]); self.rd = sum((regs_of(x) for x in ops[1:]), [])
                if base in ("v_fmac_f32", "v_pk_fmac_f16", "v_writelane_b32"): self.rd += self.wr
                if base == "v_cndmask_b32" and len(ops) == 3: self.rd += [("s", "vcc")]
        elif op.startswith("ds_"):
            self.kind = "ds"
            if op.startswith("ds_read") or op.startswith("ds_bpermute") or op.startswith("ds_swizzle") or op.startswith("ds_permute") or "_rtn" in op:
                self.wr = regs_of(ops[0]); self.dst = list(self.wr); self.rd = sum((regs_of(x) for x in ops[1:]), [])
            else:
                self.rd = sum((regs_of(x) for x in ops), [])
        elif op.startswith("buffer_") or op.startswith("global_"):
            self.kind = "vmem"
            self.lds = ("lds" in mods) or op.startswith("global_load_lds")
            if op in ("buffer_wbl2", "buffer_inv"):
                pass
            elif "_load" in op and not self.lds:
                self.wr = regs_of(ops[0]); self.dst = list(self.wr); self.rd = sum((regs_of(x) for x in ops[1:]), [])
            elif "_atomic" in op and "sc0" in mods:
                if op.startswith("buffer_"):
                    self.wr = regs_of(ops[0]); self.dst = list(self.wr); self.rd = sum((regs_of(x) for x in ops), [])
                else:
                    self.wr = regs_of(ops[0]); self.dst = list(self.wr); self.rd = sum((regs_of(x) for x in ops[1:]), [])
            else:
                self.rd = sum((regs_of(x) for x in ops), [])
                if self.lds: self.rd += [("s", "m0")]
                if "_store" in op and ("x4" in op or "x3" in op):
                    self.wide_store = True
                    self.dst = regs_of(ops[0]) if op.startswith("buffer_") else regs_of(ops[1])
        elif op.startswith("s_"):
            self.kind = "salu"
            if op == "s_nop":
                self.nopn = int(ops[0], 0) + 1; self.kind = "nop"
            elif op.startswith("s_cbranch") or op == "s_branch":
                self.kind = "branch"; self.target = ops[0]
            elif op == "s_endpgm":
                self.kind = "end"
            elif op in ("s_waitcnt", "s_barrier", "s_setprio", "s_sleep"):
                self.kind = "misc"
            elif op.startswith("s_load") or op in ("s_memtime", "s_memrealtime"):
                self.kind = "smem"; self.wr = regs_of(ops[0]); self.rd = sum((regs_of(x) for x in ops[1:]), [])
            elif op.startswith("s_cmp") or op.startswith("s_bitcmp"):
                self.rd = sum((regs_of(x) for x in ops), [])
            else:
                self.wr = regs_of(ops[0]); self.rd = sum((regs_of(x) for x in ops[1:]), [])
                if "saveexec" in op: self.wr += [("s", "exec")]
        else:
            raise ValueError("unknown op: " + text)

def need(p, c):
    n = 0
    pw = set(p.wr)
    if p.kind == "valu":
        vw = {r for r in pw if r[0] in "va"}
        sw = {r for r in pw if r[0] == "s"}
        if c.kind == "mfma" and vw & set(c.rd): n = max(n, 2)
        if c.kind == "mfma" and ("s", "exec") in sw: n = max(n, 4)
        if c.kind == "valu":
            cb = re.sub(r"_e(32|64)$", "", c.op)
            pb = re.sub(r"_e(32|64)$", "", p.op)
            if pb in TRANS and vw & set(c.rd): n = max(n, 1)
            if cb.startswith("v_permlane") and vw & set(c.rd): n = max(n, 2)
            if cb in ("v_readfirstlane_b32", "v_readlane_b32") and vw & set(c.rd): n = max(n, 1)
            if ("dpp" in c.text or "row_" in c.text or "quad_perm" in c.text) and vw & set(c.rd): n = max(n, 2)
            if sw & set(c.rd): n = max(n, 4 if cb in ("v_readlane_b32", "v_writelane_b32") else 2)
            if ("s", "exec") in sw: n = max(n, 5)
        if c.kind == "vmem" and sw & set(c.rd): n = max(n, 5)
        if c.kind in ("vmem", "ds") and pb_trans(p) and vw & set(c.rd): n = max(n, 1)
    if p.kind == "mfma":
        big = {8: 12, 4: 8}[p.passes]
        if c.kind == "mfma":
            if pw & set(c.srcAB): n = max(n, big)
            if pw & set(c.srcC):
                if not (c.srcC == p.wr and c.passes == p.passes): n = max(n, {8: 10, 4: 6}[p.passes])
            elif pw & set(c.wr) and not (c.wr == p.wr and c.passes == p.passes): n = max(n, big)
        elif c.kind in ("valu", "ds", "vmem"):
            if pw & (set(c.rd) | set(c.wr)): n = max(n, big)
            if c.kind == "valu" and set(p.srcC) & set(c.wr): n = max(n, {8: 7, 4: 3}[p.passes])
    if p.kind == "salu" and ("s", "m0") in pw:
        if c.kind == "vmem" and c.lds: n = max(n, 1)
    if p.kind == "vmem" and p.wide_store:
        if set(p.dst) & set(c.wr): n = max(n, 2 if c.kind in ("valu", "mfma") else 1)
    return n
def pb_trans(p):
    return re.sub(r"_e(32|64)$", "", p.op) in TRANS

MAXW = 12
class Asm:
    def __init__(self):
        self.l = []
    def __call__(self, s):
        for x in s.split("\n"):
            if x.strip(): self.l.append(x)
    def text(self):
        return "\n".join(self.l) + "\n"
    def auto_wait(self):
        out = []
        lg = []
        vm = []
        def flush_needed():
            a = any(d for d in lg); b = any(d for d in vm)
            return a, b
        for x in self.l:
            i = Ins(x)
            if i.kind in ("label", "branch", "end"):
                nl = nv = None
                for k in range(len(lg)):
                    if lg[k]: nl = len(lg) - 1 - k
                for k in range(len(vm)):
                    if vm[k]: nv = len(vm) - 1 - k
                if i.kind != "end":
                    if "KEEPVM" in x: nv = None
                    if "KEEPLG" in x: nl = None
                    if nl is not None: out.append(f"s_waitcnt lgkmcnt({min(nl,15)}) ; auto@cf"); lg = lg[len(lg) - nl:] if nl else []
                    if nv is not None: out.append(f"s_waitcnt vmcnt({min(nv,63)}) ; auto@cf"); vm = vm[len(vm) - nv:] if nv else []
                out.append(x)
                if i.kind == "label":
                    if "KEEPVM" not in x: vm = []
                    if "KEEPLG" not in x: lg = []
                continue
            if i.op == "s_waitcnt":
                m = re.search(r"lgkmcnt\((\d+)\)", x)
                if m:
                    n = int(m.group(1)); lg = lg[len(lg) - n:] if n and n < len(lg) else ([] if n == 0 else lg)
                m = re.search(r"vmcnt\((\d+)\)", x)
                if m:
                    n = int(m.group(1)); vm = vm[len(vm) - n:] if n and n < len(vm) else ([] if n == 0 else vm)
                out.append(x); continue
            touch = set(i.rd) | set(i.wr)
            nl = nv = None
            for k in range(len(lg)):
                if lg[k] & touch: nl = len(lg) - 1 - k
            for k in range(len(vm)):
                if vm[k] & touch: nv = len(vm) - 1 - k
            if nl is not None or nv is not None:
                s = "s_waitcnt"
                if nv is not None: s += f" vmcnt({min(nv,63)})"; vm = vm[len(vm) - nv:] if nv else []
                if nl is not None: s += f" lgkmcnt({min(nl,15)})"; lg = lg[len(lg) - nl:] if nl else []
                out.append(s + " ; auto")
            if i.kind == "ds": lg.append(set(i.dst))
            if i.kind == "smem":
                assert not any(lg), "smem mixed with pending ds"
            if i.kind == "vmem": vm.append(set(i.dst) if not i.wide_store else set())
            out.append(x)
        self.l = out
    def hazards(self):
        changed = True
        while changed:
            changed = False
            ins = [Ins(x) for x in self.l]
            lab = {i.label: k for k, i in enumerate(ins) if i.kind == "label"}
            preds = [[] for _ in ins]
            for k, i in enumerate(ins):
                if i.kind == "branch" and i.target in lab: preds[lab[i.target]].append(k)
                if k + 1 < len(ins) and i.kind != "end" and i.op != "s_branch": preds[k + 1].append(k)
            for k, c in enumerate(ins):
                if c.kind not in ("valu", "mfma", "ds", "vmem"): continue
                worst = 0
                stack = [(p, 0) for p in preds[k]]
                seen = {}
                while stack:
                    p, d = stack.pop()
                    if d >= MAXW: continue
                    if seen.get(p, 99) <= d: continue
                    seen[p] = d
                    pi = ins[p]
                    n = need(pi, c) if pi.kind in ("valu", "mfma", "salu", "vmem") else 0
                    if n - d > worst: worst = n - d
                    w = 0 if pi.kind in ("label", "none") else pi.nopn
                    for q in preds[p]: stack.append((q, d + w))
                if worst > 0:
                    self.l.insert(k, f"s_nop {worst-1} ; hz")
                    changed = True
                    break
        return self
    def finish(self):
        self.auto_wait()
        self.hazards_fast()
        return self.text()
    def hazards_fast(self):
        for _ in range(50):
            ins = [Ins(x) for x in self.l]
            lab = {i.label: k for k, i in enumerate(ins) if i.kind == "label"}
            preds = [[] for _ in ins]
            for k, i in enumerate(ins):
                if i.kind == "branch" and i.target in lab: preds[lab[i.target]].append(k)
                if k + 1 < len(ins) and i.kind != "end" and i.op != "s_branch": preds[k + 1].append(k)
            extra = [0] * len(ins)
            anyc = False
            for k, c in enumerate(ins):
                if c.kind not in ("valu", "mfma", "ds", "vmem"): continue
                worst = 0
                stack = [(p, 0) for p in preds[k]]
                seen = {}
                while stack:
                    p, d = stack.pop()
                    if d >= MAXW: continue
                    if seen.get(p, 99) <= d: continue
                    seen[p] = d
                    pi = ins[p]
                    n = need(pi, c) if pi.kind in ("valu", "mfma", "salu", "vmem") else 0
                    if n - d > worst: worst = n - d
                    w = (0 if pi.kind in ("label", "none") else pi.nopn) + (extra[p] if p < k else 0)
                    for q in preds[p]: stack.append((q, d + w))
                if worst > 0:
                    extra[k] = worst; anyc = True
            if not anyc: return
            out = []
            for k, x in enumerate(self.l):
                if extra[k]: out.append(f"s_nop {extra[k]-1} ; hz")
                out.append(x)
            self.l = out
        raise RuntimeError("hazard fixpoint not reached")
```

```python
import sys, math, struct
from asmlib import *

def f2u(x): return struct.unpack("<I", struct.pack("<f", x))[0]
C_SCALE = math.log2(math.e) / math.sqrt(128.0)
T_LOG2 = 8.0
WOT_OFF = 16 * 1024 * 1024
UNIT = 16384
NUNIT = 5

def vr(a, n=1): return f"v{a}" if n == 1 else f"v[{a}:{a+n-1}]"
def sr(a, n=1): return f"s{a}" if n == 1 else f"s[{a}:{a+n-1}]"

def interleave(A, mf, fill, lead=0):
    fill = list(fill)
    for _ in range(min(lead, len(fill))): A(fill.pop(0))
    n = len(mf)
    tot = len(fill)
    done = 0
    for i, m in enumerate(mf):
        A(m)
        upto = (tot * (i + 1)) // n
        while done < upto:
            A(fill[done]); done += 1

def make_srd(A, d, lo, hi, off_s, size):
    if off_s is None:
        A(f"s_mov_b32 s{d}, s{lo}\ns_and_b32 s{d+1}, s{hi}, 0xffff")
    else:
        A(f"s_add_u32 s{d}, s{lo}, s{off_s}\ns_addc_u32 s{d+1}, s{hi}, 0\ns_and_b32 s{d+1}, s{d+1}, 0xffff")
    if isinstance(size, str): A(f"s_mov_b32 s{d+2}, {size}")
    else: A(f"s_mov_b32 s{d+2}, {hex(size)}")
    A(f"s_mov_b32 s{d+3}, 0x20000")

def gen_attn(A, nt=" nt"):
    S_WAVE, S_B, S_H, S_T0, S_T1, S_T2 = 3, 32, 33, 34, 35, 36
    S_C, S_POSK, S_POSV, S_UK, S_UV, S_UI, S_IT, S_WOFF, S_TC = 37, 38, 39, 40, 41, 42, 43, 44, 45
    SK, SV, SX, SWQ, SWS, SWO = 8, 12, 16, 20, 24, 28
    V_LANE = 1
    V_KD = 2
    V_VD = 6
    V_KA = 8
    V_VA = 16
    V_KAc = 20
    V_VAc = 28
    Q = 32
    O = 64
    S0, S1 = 128, 144
    P0, P1 = 160, 168
    F0, F1 = 176, 208
    V_M, V_THR, V_NMC, V_L0, V_L1, V_T, V_T2, V_T3 = 240, 241, 242, 243, 244, 245, 246, 247
    V_WD = 248
    V_XD = 249
    V_WA = 250
    V_OST = 254
    V_TMP = 255

    A(f"s_cmp_ge_u32 s2, 512\ns_cbranch_scc1 L1_end")
    A("s_load_dwordx16 s[48:63], s[0:1], 0")
    A(f"v_and_b32 v{V_LANE}, 63, v0")
    A(f"v_lshrrev_b32 v{V_TMP}, 6, v0")
    A(f"v_readfirstlane_b32 s{S_WAVE}, v{V_TMP}")
    A(f"s_and_b32 s{S_T0}, s2, 255")
    A(f"s_and_b32 s{S_H}, s{S_T0}, 31")
    A(f"s_lshr_b32 s{S_B}, s{S_T0}, 5")
    A(f"s_lshr_b32 s{S_T1}, s2, 8\ns_lshl_b32 s{S_T1}, s{S_T1}, 3\ns_add_u32 s{S_B}, s{S_B}, s{S_T1}")
    L = V_LANE
    A(f"v_lshrrev_b32 v{V_T}, 4, v{L}")
    A(f"v_and_b32 v{V_T2}, 15, v{L}")
    for j in range(4):
        A(f"v_add_u32 v{V_T3}, {4*j}, v{V_T}")
        A(f"v_xor_b32 v{V_T3}, v{V_T3}, v{V_T2}")
        A(f"v_lshlrev_b32 v{V_T3}, 4, v{V_T3}")
        A(f"v_lshl_add_u32 v{V_KD+j}, v{V_T}, 8, v{V_T3}")
    A(f"v_lshlrev_b32 v{V_T3}, 2, v{V_T}")
    A(f"v_xor_b32 v{V_T3}, v{V_T3}, v{V_T2}")
    A(f"v_lshlrev_b32 v{V_T3}, 4, v{V_T3}")
    A(f"v_lshl_add_u32 v{V_VD}, v{V_T}, 8, v{V_T3}")
    A(f"v_lshl_add_u32 v{V_WD}, v{V_T}, 13, v{V_T3}")
    A(f"v_lshl_add_u32 v{V_OST}, v{V_T}, 10, v{V_T3}")
    V_XD2 = 7
    A(f"v_lshrrev_b32 v{V_T}, 3, v{L}")
    A(f"v_and_b32 v{V_T2}, 7, v{L}")
    A(f"v_lshrrev_b32 v{V_T3}, 1, v{V_T}")
    A(f"v_xor_b32 v{V_T3}, v{V_T3}, v{V_T2}")
    A(f"v_lshlrev_b32 v{V_T3}, 4, v{V_T3}")
    A(f"v_lshl_add_u32 v{V_XD}, v{V_T}, 10, v{V_T3}")
    A(f"v_xor_b32 v{V_XD2}, 64, v{V_XD}")
    A(f"v_and_b32 v{V_T}, 31, v{L}")
    A(f"v_lshrrev_b32 v{V_T2}, 5, v{L}")
    A(f"v_and_b32 v{V_T3}, 15, v{L}")
    A(f"v_xor_b32 v{V_T3}, v{V_T3}, v{V_T2}")
    A(f"v_lshlrev_b32 v{V_T3}, 4, v{V_T3}")
    A(f"v_lshl_add_u32 v{V_T3}, v{V_T}, 8, v{V_T3}")
    for s in range(8):
        A(f"v_xor_b32 v{V_KA+s}, {32*s}, v{V_T3}")
    A(f"v_lshrrev_b32 v{V_T3}, 1, v{V_T}")
    A(f"v_and_b32 v{V_T3}, 7, v{V_T3}")
    A(f"v_xor_b32 v{V_T3}, v{V_T3}, v{V_T2}")
    A(f"v_lshlrev_b32 v{V_T3}, 4, v{V_T3}")
    A(f"v_lshl_add_u32 v{V_T3}, v{V_T}, 7, v{V_T3}")
    A(f"s_lshl_b32 s{S_WOFF}, s{S_WAVE}, 12")
    A(f"v_add_u32 v{V_T3}, s{S_WOFF}, v{V_T3}")
    V_XA = V_KAc
    for s in range(4):
        A(f"v_xor_b32 v{V_XA+s}, {32*s}, v{V_T3}")
    A(f"v_bfe_u32 v{V_T}, v{L}, 2, 2")
    A(f"v_and_b32 v{V_T2}, 1, v{L}")
    A(f"v_bfe_u32 v{V_T3}, v{L}, 1, 1")
    A(f"v_lshl_add_u32 v{V_T2}, v{V_T2}, 1, v{V_T3}")
    A(f"v_lshlrev_b32 v{V_T2}, 3, v{V_T2}")
    A(f"v_bfe_u32 v{V_T3}, v{L}, 4, 1")
    A(f"v_lshl_add_u32 v{V_T2}, v{V_T3}, 5, v{V_T2}")
    A(f"v_lshl_add_u32 v{V_T2}, v{V_T}, 8, v{V_T2}")
    A(f"v_lshrrev_b32 v{V_T3}, 5, v{L}")
    for blk in range(4):
        A(f"v_xor_b32 v{V_TMP}, {blk}, v{V_T}")
        A(f"v_lshl_add_u32 v{V_TMP}, v{V_TMP}, 6, v{V_T2}")
        A(f"v_lshl_add_u32 v{V_VA+blk}, v{V_T3}, 10, v{V_TMP}")
        A(f"v_lshl_add_u32 v{V_WA+blk}, v{V_T3}, 11, v{V_TMP}")
    A("s_waitcnt lgkmcnt(0)")
    A(f"s_lshl_b32 s{S_T0}, s{S_B}, 5\ns_add_u32 s{S_T0}, s{S_T0}, s{S_H}")
    A(f"s_lshl_b32 s{S_T1}, s{S_T0}, 18")
    make_srd(A, SK, 50, 51, S_T1, 262144)
    make_srd(A, SV, 52, 53, S_T1, 262144)
    A(f"s_lshl_b32 s{S_T1}, s{S_B}, 17")
    make_srd(A, SX, 48, 49, S_T1, 131072)
    A(f"s_lshl_b32 s{S_T1}, s{S_H}, 8")
    A(f"s_sub_u32 s{S_T2}, {4096*1024}, s{S_T1}")
    make_srd(A, SWQ, 54, 55, S_T1, f"s{S_T2}")
    make_srd(A, SWS, 62, 63, None, 32 * 1024 * 1024)
    make_srd(A, SWO, 56, 57, None, 4096 * 1024)
    A(f"s_mov_b32 s{S_C}, {hex(f2u(C_SCALE))}")
    A(f"s_mov_b32 s{S_TC}, {hex(f2u(T_LOG2 / C_SCALE))}")

    A(f"s_cmp_lt_u32 s2, 256\ns_cbranch_scc1 L1_nowot")
    A(f"s_sub_u32 s{S_T0}, s2, 256")
    A(f"s_lshr_b32 s{S_T1}, s{S_T0}, 2")
    A(f"s_and_b32 s{S_T0}, s{S_T0}, 3")
    A(f"s_lshl_b32 s{S_T2}, s{S_T1}, 16")
    A(f"s_lshl_b32 s46, s{S_T0}, 8\ns_add_u32 s{S_T2}, s{S_T2}, s46")
    A(f"s_lshl_b32 s46, s{S_WAVE}, 14\ns_add_u32 s{S_T2}, s{S_T2}, s46")
    for j in range(4):
        A(f"s_add_u32 m0, s{S_WOFF}, {j*1024}")
        A(f"s_add_u32 s46, s{S_T2}, {j*4096}")
        A(f"buffer_load_dwordx4 v{V_OST}, s[{SWO}:{SWO+3}], s46 offen lds")
    A("s_waitcnt vmcnt(0)\ns_barrier")
    A(f"v_bfe_u32 v{V_T}, v{L}, 2, 2")
    A(f"v_xor_b32 v{V_T2}, s{S_WAVE}, v{V_T}")
    A(f"v_xor_b32 v{V_T}, v{V_T}, v{V_T2}")
    A(f"v_bfe_u32 v{V_T}, v{L}, 2, 2")
    A(f"v_sub_u32 v{V_T2}, v{V_T2}, v{V_T}")
    A(f"v_lshl_add_u32 v{V_T2}, v{V_T2}, 6, v{V_WA}")
    for s in range(4):
        A(f"ds_read_b64_tr_b16 v[{F0+4*s}:{F0+4*s+1}], v{V_T2} offset:{s*4096}")
        A(f"ds_read_b64_tr_b16 v[{F0+4*s+2}:{F0+4*s+3}], v{V_T2} offset:{s*4096+1024}")
    A(f"s_lshl_b32 s{S_T0}, s{S_T0}, 2\ns_add_u32 s{S_T0}, s{S_T0}, s{S_WAVE}\ns_lshl_b32 s{S_T0}, s{S_T0}, 18")
    A(f"s_lshl_b32 s{S_T1}, s{S_T1}, 12\ns_add_u32 s{S_T0}, s{S_T0}, s{S_T1}\ns_add_u32 s{S_T0}, s{S_T0}, {WOT_OFF}")
    A(f"v_lshlrev_b32 v{V_T}, 4, v{L}")
    for s in range(4):
        A(f"buffer_store_dwordx4 v[{F0+4*s}:{F0+4*s+3}], v{V_T}, s[{SWS}:{SWS+3}], s{S_T0} offen offset:{s*1024}")
    A("s_barrier")
    A("L1_nowot:")

    def dma_K(unit_expr_s):
        A(f"s_add_u32 m0, s{unit_expr_s}, s{S_WOFF}")
        for j in range(4):
            A(f"buffer_load_dwordx4 v{V_KD+j}, s[{SK}:{SK+3}], s{S_POSK} offen offset:{j*1024}{nt} lds")
        A(f"s_add_u32 s{S_POSK}, s{S_POSK}, {UNIT}")
    def dma_V(unit_expr_s):
        A(f"s_add_u32 m0, s{unit_expr_s}, s{S_WOFF}")
        for j in range(4):
            A(f"buffer_load_dwordx4 v{V_VD}, s[{SV}:{SV+3}], s{S_POSV} offen offset:{j*1024}{nt} lds")
        A(f"s_add_u32 s{S_POSV}, s{S_POSV}, {UNIT}")
    def dma_chunk(c):
        uw = ((2 * c) % 4) * UNIT; ux = ((2 * c + 1) % 4) * UNIT
        A(f"s_lshl_b32 s{S_T0}, s{S_WAVE}, 17")
        for j in range(4):
            A(f"s_add_u32 m0, s{S_WOFF}, {uw + j*1024}")
            A(f"s_add_u32 s{S_T1}, s{S_T0}, {(64*c + 4*j)*8192}")
            A(f"buffer_load_dwordx4 v{V_WD}, s[{SWQ}:{SWQ+3}], s{S_T1} offen lds")
        A(f"s_lshl_b32 s{S_T0}, s{S_WAVE}, 15")
        for j in range(4):
            A(f"s_add_u32 m0, s{S_WOFF}, {ux + j*1024}")
            A(f"s_add_u32 s{S_T1}, s{S_T0}, {j*8192 + c*128}")
            A(f"buffer_load_dwordx4 v{V_XD if j % 2 == 0 else V_XD2}, s[{SX}:{SX+3}], s{S_T1} offen lds")
    A(f"s_mov_b32 s{S_POSK}, s{S_WOFF}\ns_mov_b32 s{S_POSV}, s{S_WOFF}")
    dma_chunk(0)
    dma_chunk(1)
    A(f"s_mov_b32 s{S_UI}, {4*UNIT}")
    dma_K(S_UI)
    XF = S0
    for c in range(8):
        if c == 0: w = 12
        elif c == 1: w = 4 + 8
        elif c < 7: w = 8
        else: w = 8
        if c == 7: w = 0 + 0
        A(f"s_waitcnt vmcnt({w})\ns_barrier")
        uw = ((2 * c) % 4) * UNIT; ux = ((2 * c + 1) % 4) * UNIT
        rd = []
        for s in range(4):
            rd.append(f"ds_read_b128 v[{XF+4*s}:{XF+4*s+3}], v{V_XA+s} offset:{ux}")
            for blk in range(4):
                d = F0 + (s * 4 + blk) * 4
                rd.append(f"ds_read_b64_tr_b16 v[{d}:{d+1}], v{V_WA+blk} offset:{uw + s*4096}")
                rd.append(f"ds_read_b64_tr_b16 v[{d+2}:{d+3}], v{V_WA+blk} offset:{uw + s*4096 + 1024}")
        for r in rd: A(r)
        for s in range(4):
            for blk in range(4):
                d = F0 + (s * 4 + blk) * 4
                cc = "0" if (c == 0 and s == 0) else f"v[{O+16*blk}:{O+16*blk+15}]"
                A(f"v_mfma_f32_32x32x16_bf16 v[{O+16*blk}:{O+16*blk+15}], v[{d}:{d+3}], v[{XF+4*s}:{XF+4*s+3}], {cc}")
        if c + 2 < 8:
            A("s_barrier")
            dma_chunk(c + 2)
    A("s_barrier")
    for p, u in ((1, 0), (2, 1), (3, 2)):
        A(f"s_mov_b32 s{S_UI}, {u*UNIT}")
        (dma_V if p % 2 else dma_K)(S_UI)
    for blk in range(4):
        for j in range(8):
            A(f"v_cvt_pk_bf16_f32 v{Q+blk*8+j}, v{O+16*blk+2*j}, v{O+16*blk+2*j+1}")
    for r in range(64):
        A(f"v_mov_b32 v{O+r}, 0")
    A(f"v_mov_b32 v{V_M}, 0xff7fffff\nv_mov_b32 v{V_THR}, 0xff7fffff\nv_mov_b32 v{V_NMC}, 0")
    A(f"v_mov_b32 v{V_L0}, 0\nv_mov_b32 v{V_L1}, 0")
    A(f"s_mov_b32 s{S_UI}, {3*UNIT}")
    dma_K(S_UI)
    A(f"s_mov_b32 s{S_UK}, {4*UNIT}\ns_mov_b32 s{S_UV}, 0\ns_mov_b32 s{S_IT}, 0")
    A("s_waitcnt vmcnt(12)\ns_barrier")
    A("s_branch L1_body")
    A("L1_loop:")
    A("s_waitcnt vmcnt(4)\ns_barrier")
    dma_V(S_UK)
    dma_K(S_UV)
    for s in (S_UK, S_UV):
        A(f"s_add_u32 s{s}, s{s}, {2*UNIT}\ns_cmp_ge_u32 s{s}, {NUNIT*UNIT}\ns_cselect_b32 s{S_T0}, {NUNIT*UNIT}, 0\ns_sub_u32 s{s}, s{s}, s{S_T0}")
    A("L1_body:")
    for s in range(8): A(f"v_add_u32 v{V_KAc+s}, s{S_UK}, v{V_KA+s}")
    for s in range(8): A(f"ds_read_b128 v[{F0+4*s}:{F0+4*s+3}], v{V_KAc+s}")
    for s in range(8): A(f"ds_read_b128 v[{F1+4*s}:{F1+4*s+3}], v{V_KAc+s} offset:8192")
    for b in range(4): A(f"v_add_u32 v{V_VAc+b}, s{S_UV}, v{V_VA+b}")
    def qk(F, S):
        return [f"v_mfma_f32_32x32x16_bf16 v[{S}:{S+15}], v[{F+4*s}:{F+4*s+3}], v[{Q+4*s}:{Q+4*s+3}], " + ("0" if s == 0 else f"v[{S}:{S+15}]") for s in range(8)]
    def vread(F, half):
        r = []
        for s in range(2):
            for b in range(4):
                d = F + (s * 4 + b) * 4
                off = half * 8192 + s * 4096
                r.append(f"ds_read_b64_tr_b16 v[{d}:{d+1}], v{V_VAc+b} offset:{off}")
                r.append(f"ds_read_b64_tr_b16 v[{d+2}:{d+3}], v{V_VAc+b} offset:{off+2048}")
        return r
    def pv(F, P):
        return [f"v_mfma_f32_32x32x16_bf16 v[{O+16*b}:{O+16*b+15}], v[{F+(s*4+b)*4}:{F+(s*4+b)*4+3}], v[{P+4*s}:{P+4*s+3}], v[{O+16*b}:{O+16*b+15}]" for s in range(2) for b in range(4)]
    def smax(S):
        r = [f"v_max3_f32 v{V_T}, v{S}, v{S+1}, v{S+2}"]
        for i in range(3, 15, 2): r.append(f"v_max3_f32 v{V_T}, v{V_T}, v{S+i}, v{S+i+1}")
        r.append(f"v_max_f32 v{V_T}, v{V_T}, v{S+15}")
        r.append(f"v_cmp_gt_f32 vcc, v{V_T}, v{V_THR}")
        return r
    def sexp(S, P):
        r = []
        for i in range(0, 16, 2):
            r += [f"v_fma_f32 v{S+i}, v{S+i}, s{S_C}, v{V_NMC}", f"v_fma_f32 v{S+i+1}, v{S+i+1}, s{S_C}, v{V_NMC}",
                  f"v_exp_f32 v{S+i}, v{S+i}", f"v_exp_f32 v{S+i+1}, v{S+i+1}"]
            if i >= 2:
                r += [f"v_add_f32 v{V_L0}, v{V_L0}, v{S+i-2}", f"v_add_f32 v{V_L1}, v{V_L1}, v{S+i-1}",
                      f"v_cvt_pk_bf16_f32 v{P+(i-2)//2}, v{S+i-2}, v{S+i-1}"]
        r += [f"v_add_f32 v{V_L0}, v{V_L0}, v{S+14}", f"v_add_f32 v{V_L1}, v{V_L1}, v{S+15}",
              f"v_cvt_pk_bf16_f32 v{P+7}, v{S+14}, v{S+15}"]
        return r
    def rescale():
        A(f"v_mov_b32 v{V_T2}, v{V_T}")
        A(f"v_permlane32_swap_b32 v{V_T}, v{V_T2}")
        A(f"v_max3_f32 v{V_T}, v{V_T}, v{V_T2}, v{V_M}")
        A(f"v_sub_f32 v{V_T2}, v{V_M}, v{V_T}")
        A(f"v_mul_f32 v{V_T2}, s{S_C}, v{V_T2}")
        A(f"v_exp_f32 v{V_T2}, v{V_T2}")
        A(f"v_mov_b32 v{V_M}, v{V_T}")
        A(f"v_add_f32 v{V_THR}, s{S_TC}, v{V_T}")
        A(f"v_mul_f32 v{V_NMC}, s{S_C}, v{V_T}")
        A(f"v_sub_f32 v{V_NMC}, 0, v{V_NMC}")
        A(f"v_mul_f32 v{V_L0}, v{V_L0}, v{V_T2}\nv_mul_f32 v{V_L1}, v{V_L1}, v{V_T2}")
        for r in range(64): A(f"v_mul_f32 v{O+r}, v{O+r}, v{V_T2}")
    for m in qk(F0, S0): A(m)
    q1 = qk(F1, S1)
    vr0 = vread(F0, 0)
    A(q1[0])
    for r in vr0[:12]: A(r)
    for r in smax(S0): A(r)
    A("s_cbranch_vccnz L1_rare0 ; KEEPLG")
    A("L1_back0: ; KEEPLG")
    interleave(A, q1[1:], vr0[12:] + sexp(S0, P0))
    vr1 = vread(F1, 1)
    for r in smax(S1): A(r)
    A("s_cbranch_vccnz L1_rare1")
    interleave(A, pv(F0, P0), vr1 + sexp(S1, P1))
    A("L1_back1:")
    for m in pv(F1, P1): A(m)
    A(f"s_add_u32 s{S_IT}, s{S_IT}, 1\ns_cmp_lt_u32 s{S_IT}, 16\ns_cbranch_scc1 L1_loop")
    A(f"v_add_f32 v{V_L0}, v{V_L0}, v{V_L1}")
    A(f"v_mov_b32 v{V_T2}, v{V_L0}")
    A(f"v_permlane32_swap_b32 v{V_L0}, v{V_T2}")
    A(f"v_add_f32 v{V_L0}, v{V_L0}, v{V_T2}")
    A(f"v_rcp_f32 v{V_L0}, v{V_L0}")
    A(f"s_lshl_b32 s{S_T0}, s{S_B}, 5\ns_add_u32 s{S_T0}, s{S_T0}, s{S_H}\ns_lshl_b32 s{S_T0}, s{S_T0}, 2\ns_add_u32 s{S_T0}, s{S_T0}, s{S_WAVE}\ns_lshl_b32 s{S_T0}, s{S_T0}, 13")
    A(f"s_add_u32 s{S_T1}, s{S_T0}, 4096")
    A(f"v_lshlrev_b32 v{V_OST}, 4, v{V_LANE}")
    for s in range(8):
        for j in range(8): A(f"v_mul_f32 v{O+8*s+j}, v{O+8*s+j}, v{V_L0}")
        for j in range(4): A(f"v_cvt_pk_bf16_f32 v{F0+4*s+j}, v{O+8*s+2*j}, v{O+8*s+2*j+1}")
        A(f"buffer_store_dwordx4 v[{F0+4*s}:{F0+4*s+3}], v{V_OST}, s[{SWS}:{SWS+3}], s{S_T0 if s < 4 else S_T1} offen offset:{(s%4)*1024}")
    A("L1_end:\ns_endpgm")
    A("L1_rare0:")
    A("s_waitcnt lgkmcnt(0)")
    rescale()
    A("s_branch L1_back0")
    A("L1_rare1:")
    for m in pv(F0, P0): A(m)
    rescale()
    for r in vr1 + sexp(S1, P1): A(r)
    A("s_branch L1_back1")

def gen_oproj(A):
    SWS, SOUT = 8, 12
    S_WAVE, S_B, S_NS, S_T0, S_T1, S_OA, S_WA = 3, 16, 17, 18, 19, 20, 21
    ACC = 32
    BUF = 96; DEPTH = 6
    A("s_cmp_ge_u32 s2, 256\ns_cbranch_scc1 L2_end")
    A("s_load_dwordx2 s[4:5], s[0:1], 56\ns_load_dwordx2 s[6:7], s[0:1], 40")
    A("v_and_b32 v1, 63, v0\nv_lshrrev_b32 v2, 6, v0\nv_readfirstlane_b32 s3, v2")
    A(f"s_and_b32 s{S_B}, s2, 7\ns_lshl_b32 s{S_B}, s{S_B}, 1\ns_bfe_u32 s{S_T0}, s2, 0x10003\ns_add_u32 s{S_B}, s{S_B}, s{S_T0}")
    A(f"s_lshr_b32 s{S_NS}, s2, 4")
    A("v_lshlrev_b32 v2, 4, v1")
    for qt in range(4): A(f"v_add_u32 v{4+qt}, {qt*8192}, v2")
    A("s_waitcnt lgkmcnt(0)")
    make_srd(A, SWS, 4, 5, None, 32 * 1024 * 1024)
    make_srd(A, SOUT, 6, 7, None, 2 * 1024 * 1024)
    A(f"s_lshl_b32 s{S_OA}, s{S_B}, 20\ns_lshl_b32 s{S_T0}, s3, 18\ns_add_u32 s{S_OA}, s{S_OA}, s{S_T0}")
    A(f"s_lshl_b32 s{S_WA}, s{S_NS}, 18\ns_lshl_b32 s{S_T0}, s3, 16\ns_add_u32 s{S_WA}, s{S_WA}, s{S_T0}\ns_add_u32 s{S_WA}, s{S_WA}, {WOT_OFF}")
    def load(k):
        h, s = k // 8, k % 8
        d = BUF + (k % DEPTH) * 20
        if k % 4 == 0:
            A(f"s_add_u32 s{S_T0}, s{S_OA}, {h*32768 + (s//4)*4096}")
            A(f"s_add_u32 s{S_T1}, s{S_WA}, {(k//4)*4096}")
        A(f"buffer_load_dwordx4 v[{d}:{d+3}], v2, s[{SWS}:{SWS+3}], s{S_T1} offen offset:{(k%4)*1024}")
        for qt in range(4):
            A(f"buffer_load_dwordx4 v[{d+4+4*qt}:{d+7+4*qt}], v{4+qt}, s[{SWS}:{SWS+3}], s{S_T0} offen offset:{(k%4)*1024}")
    for k in range(DEPTH - 1): load(k)
    for k in range(64):
        if k + DEPTH - 1 < 64: load(k + DEPTH - 1)
        d = BUF + (k % DEPTH) * 20
        for qt in range(4):
            cc = "0" if k == 0 else f"v[{ACC+16*qt}:{ACC+16*qt+15}]"
            A(f"v_mfma_f32_32x32x16_bf16 v[{ACC+16*qt}:{ACC+16*qt+15}], v[{d}:{d+3}], v[{d+4+4*qt}:{d+7+4*qt}], {cc}")
    A(f"s_lshl_b32 s{S_T0}, s3, 14\nv_add_u32 v8, s{S_T0}, v2")
    for qt in range(4):
        for g in range(4):
            A(f"ds_write_b128 v8, v[{ACC+16*qt+4*g}:{ACC+16*qt+4*g+3}] offset:{(qt*4+g)*1024}")
    A("s_waitcnt lgkmcnt(0)\ns_barrier")
    A(f"s_lshl_b32 s{S_T0}, s3, 12\nv_add_u32 v8, s{S_T0}, v2")
    for w in range(4):
        for g in range(4):
            A(f"ds_read_b128 v[{BUF+(w*4+g)*4}:{BUF+(w*4+g)*4+3}], v8 offset:{w*16384+g*1024}")
    for r in range(16):
        A(f"v_add_f32 v{BUF+r}, v{BUF+r}, v{BUF+16+r}")
        A(f"v_add_f32 v{BUF+32+r}, v{BUF+32+r}, v{BUF+48+r}")
    for r in range(16):
        A(f"v_add_f32 v{BUF+r}, v{BUF+r}, v{BUF+32+r}")
    for j in range(8):
        A(f"v_cvt_pk_bf16_f32 v{ACC+j}, v{BUF+2*j}, v{BUF+2*j+1}")
    A("v_and_b32 v9, 31, v1\nv_lshlrev_b32 v9, 10, v9\nv_lshrrev_b32 v10, 5, v1\nv_lshl_add_u32 v9, v10, 4, v9")
    A(f"s_lshl_b32 s{S_T0}, s{S_B}, 17\ns_lshl_b32 s{S_T1}, s3, 15\ns_add_u32 s{S_T0}, s{S_T0}, s{S_T1}\ns_lshl_b32 s{S_T1}, s{S_NS}, 6\ns_add_u32 s{S_T0}, s{S_T0}, s{S_T1}")
    A(f"buffer_store_dwordx4 v[{ACC}:{ACC+3}], v9, s[{SOUT}:{SOUT+3}], s{S_T0} offen")
    A(f"buffer_store_dwordx4 v[{ACC+4}:{ACC+7}], v9, s[{SOUT}:{SOUT+3}], s{S_T0} offen offset:32")
    A("L2_end:\ns_endpgm")

def build():
    A1 = Asm(); gen_attn(A1)
    A2 = Asm(); gen_oproj(A2)
    t = header(["; @launch kernel=attn_kernel grid=(512,1,1) block=(256,1,1) lds=81920",
                "; @launch kernel=oproj_kernel grid=(256,1,1) block=(256,1,1) lds=65536"])
    t += kstart("attn_kernel") + A1.finish() + kstart("oproj_kernel") + A2.finish()
    t += RODATA + kdesc("attn_kernel") + kdesc("oproj_kernel")
    return t

if __name__ == "__main__":
    open(sys.argv[1] if len(sys.argv) > 1 else "v1.s", "w").write(build())
```

```python
import re
KN = "standalone__mha_block_cached__near_ridge_kernel"

def header(launch_lines):
    return "\n".join(launch_lines) + '\n.amdgcn_target "amdgcn-amd-amdhsa--gfx950"\n.text\n'

def kstart(name):
    return f".globl {name}\n.p2align 8\n.type {name},@function\n{name}:\n"

def kdesc(name, vgpr=256, sgpr=102, accum=256):
    return (f".p2align 6\n.amdhsa_kernel {name}\n  .amdhsa_next_free_vgpr {vgpr}\n  .amdhsa_next_free_sgpr {sgpr}\n"
            f"  .amdhsa_accum_offset {accum}\n  .amdhsa_group_segment_fixed_size 0\n  .amdhsa_kernarg_size 64\n"
            f"  .amdhsa_user_sgpr_count 2\n  .amdhsa_user_sgpr_kernarg_segment_ptr 1\n  .amdhsa_system_sgpr_workgroup_id_x 1\n"
            f".end_amdhsa_kernel\n")
RODATA = '.section .rodata,"a"\n'

_REG = re.compile(r"^(-|abs\(|-abs\(|\|)?([vas])(\d+)\)?\|?$")
_RNG = re.compile(r"^([vas])\[(\d+):(\d+)\]$")
def regs_of(tok):
    tok = tok.strip()
    m = _RNG.match(tok)
    if m:
        return [(m.group(1), i) for i in range(int(m.group(2)), int(m.group(3)) + 1)]
    m = _REG.match(tok)
    if m:
        return [(m.group(2), int(m.group(3)))]
    if tok == "vcc": return [("s", "vcc")]
    if tok in ("vcc_lo", "vcc_hi"): return [("s", "vcc")]
    if tok == "exec": return [("s", "exec")]
    if tok == "m0": return [("s", "m0")]
    return []

TRANS = ("v_exp_f32", "v_log_f32", "v_rcp_f32", "v_rsq_f32", "v_sqrt_f32", "v_sin_f32", "v_cos_f32")

class Ins:
    __slots__ = ("text", "op", "kind", "wr", "rd", "srcC", "srcAB", "passes", "label", "target", "lds", "nopn", "wide_store", "dst")
    def __init__(self, text):
        self.text = text
        t = text.split(";")[0].strip()
        self.label = None; self.target = None; self.wr = []; self.rd = []; self.srcC = []; self.srcAB = []
        self.passes = 0; self.lds = False; self.nopn = 1; self.wide_store = False; self.dst = []
        if not t or t.startswith("."):
            self.op = ""; self.kind = "none"; return
        if t.endswith(":"):
            self.op = ""; self.kind = "label"; self.label = t[:-1]; return
        parts = t.split(None, 1)
        op = self.op = parts[0]
        rest = parts[1] if len(parts) > 1 else ""
        toks = [x.strip() for x in rest.split(",")]
        last = toks[-1].split() if toks and toks[-1] else []
        mods = []
        if last:
            toks[-1] = last[0]; mods = last[1:]
        ops = [x for x in toks if x]
        base = re.sub(r"_e(32|64)$", "", op)
        if op.startswith("v_mfma"):
            self.kind = "mfma"
            self.passes = 8 if "32x32x16" in op else 4 if "16x16x32" in op else None
            assert self.passes, op
            self.wr = regs_of(ops[0]); self.srcAB = regs_of(ops[1]) + regs_of(ops[2]); self.srcC = regs_of(ops[3])
            self.rd = self.srcAB + self.srcC
        elif op.startswith("v_"):
            self.kind = "valu"
            if base.startswith("v_cmp"):
                self.wr = regs_of(ops[0]); self.rd = sum((regs_of(x) for x in ops[1:]), [])
                if base.startswith("v_cmpx"): self.wr += [("s", "exec")]
            elif base in ("v_readfirstlane_b32", "v_readlane_b32"):
                self.wr = regs_of(ops[0]); self.rd = sum((regs_of(x) for x in ops[1:]), [])
            elif base.startswith("v_permlane32_swap") or base.startswith("v_permlane16_swap"):
                self.wr = regs_of(ops[0]) + regs_of(ops[1]); self.rd = list(self.wr)
            elif base in ("v_add_co_u32", "v_sub_co_u32", "v_addc_co_u32", "v_subb_co_u32"):
                self.wr = regs_of(ops[0]) + regs_of(ops[1]); self.rd = sum((regs_of(x) for x in ops[2:]), [])
            elif base == "v_nop":
                pass
            else:
                self.wr = regs_of(ops[0]); self.rd = sum((regs_of(x) for x in ops[1:]), [])
                if base in ("v_fmac_f32", "v_pk_fmac_f16", "v_writelane_b32", "v_dot2c_f32_bf16"): self.rd += self.wr
                if base == "v_cndmask_b32" and len(ops) == 3: self.rd += [("s", "vcc")]
        elif op.startswith("ds_"):
            self.kind = "ds"
            if op.startswith("ds_read") or op.startswith("ds_bpermute") or op.startswith("ds_swizzle") or op.startswith("ds_permute") or "_rtn" in op:
                self.wr = regs_of(ops[0]); self.dst = list(self.wr); self.rd = sum((regs_of(x) for x in ops[1:]), [])
            else:
                self.rd = sum((regs_of(x) for x in ops), [])
        elif op.startswith("buffer_") or op.startswith("global_"):
            self.kind = "vmem"
            self.lds = ("lds" in mods) or op.startswith("global_load_lds")
            if op in ("buffer_wbl2", "buffer_inv"):
                pass
            elif "_load" in op and not self.lds:
                self.wr = regs_of(ops[0]); self.dst = list(self.wr); self.rd = sum((regs_of(x) for x in ops[1:]), [])
            elif "_atomic" in op and "sc0" in mods:
                if op.startswith("buffer_"):
                    self.wr = regs_of(ops[0]); self.dst = list(self.wr); self.rd = sum((regs_of(x) for x in ops), [])
                else:
                    self.wr = regs_of(ops[0]); self.dst = list(self.wr); self.rd = sum((regs_of(x) for x in ops[1:]), [])
            else:
                self.rd = sum((regs_of(x) for x in ops), [])
                if self.lds: self.rd += [("s", "m0")]
                if "_store" in op and ("x4" in op or "x3" in op):
                    self.wide_store = True
                    self.dst = regs_of(ops[0]) if op.startswith("buffer_") else regs_of(ops[1])
        elif op.startswith("s_"):
            self.kind = "salu"
            if op == "s_nop":
                self.nopn = int(ops[0], 0) + 1; self.kind = "nop"
            elif op.startswith("s_cbranch") or op == "s_branch":
                self.kind = "branch"; self.target = ops[0]
            elif op == "s_endpgm":
                self.kind = "end"
            elif op in ("s_waitcnt", "s_barrier", "s_setprio", "s_sleep"):
                self.kind = "misc"
            elif op.startswith("s_load") or op in ("s_memtime", "s_memrealtime"):
                self.kind = "smem"; self.wr = regs_of(ops[0]); self.rd = sum((regs_of(x) for x in ops[1:]), [])
            elif op.startswith("s_cmp") or op.startswith("s_bitcmp"):
                self.rd = sum((regs_of(x) for x in ops), [])
            else:
                self.wr = regs_of(ops[0]); self.rd = sum((regs_of(x) for x in ops[1:]), [])
                if "saveexec" in op: self.wr += [("s", "exec")]
        else:
            raise ValueError("unknown op: " + text)

def need(p, c):
    n = 0
    pw = set(p.wr)
    if p.kind == "valu":
        vw = {r for r in pw if r[0] in "va"}
        sw = {r for r in pw if r[0] == "s"}
        if c.kind == "mfma" and vw & set(c.rd): n = max(n, 2)
        if c.kind == "mfma" and ("s", "exec") in sw: n = max(n, 4)
        if c.kind == "valu":
            cb = re.sub(r"_e(32|64)$", "", c.op)
            pb = re.sub(r"_e(32|64)$", "", p.op)
            if pb in TRANS and vw & set(c.rd): n = max(n, 1)
            if pb.startswith("v_dot") and vw & (set(c.rd) | set(c.wr)):
                same_acc = cb.startswith("v_dot") and cb == pb and set(c.wr) == vw and not (vw & set(regs_of(c.text.split(",")[1].strip()) + regs_of(c.text.split(",")[2].split(";")[0].strip())))
                if not same_acc: n = max(n, 3)
            if cb.startswith("v_permlane") and vw & set(c.rd): n = max(n, 2)
            if cb in ("v_readfirstlane_b32", "v_readlane_b32") and vw & set(c.rd): n = max(n, 1)
            if ("dpp" in c.text or "row_" in c.text or "quad_perm" in c.text) and vw & set(c.rd): n = max(n, 2)
            if sw & set(c.rd): n = max(n, 4 if cb in ("v_readlane_b32", "v_writelane_b32") else 2)
            if ("s", "exec") in sw: n = max(n, 5)
        if c.kind == "vmem" and sw & set(c.rd): n = max(n, 5)
        if c.kind in ("vmem", "ds") and pb_trans(p) and vw & set(c.rd): n = max(n, 1)
    if p.kind == "mfma":
        big = {8: 12, 4: 8}[p.passes]
        if c.kind == "mfma":
            if pw & set(c.srcAB): n = max(n, big)
            if pw & set(c.srcC):
                if not (c.srcC == p.wr and c.passes == p.passes): n = max(n, {8: 10, 4: 6}[p.passes])
            elif pw & set(c.wr) and not (c.wr == p.wr and c.passes == p.passes): n = max(n, big)
        elif c.kind in ("valu", "ds", "vmem"):
            if pw & (set(c.rd) | set(c.wr)): n = max(n, big)
            if c.kind == "valu" and set(p.srcC) & set(c.wr): n = max(n, {8: 7, 4: 3}[p.passes])
    if p.kind == "salu" and ("s", "m0") in pw:
        if c.kind == "vmem" and c.lds: n = max(n, 1)
    if p.kind == "vmem" and p.wide_store:
        if set(p.dst) & set(c.wr): n = max(n, 2 if c.kind in ("valu", "mfma") else 1)
    return n
def pb_trans(p):
    return re.sub(r"_e(32|64)$", "", p.op) in TRANS

MAXW = 12
class Asm:
    def __init__(self):
        self.l = []
    def __call__(self, s):
        for x in s.split("\n"):
            if x.strip(): self.l.append(x)
    def text(self):
        return "\n".join(self.l) + "\n"
    def auto_wait(self):
        out = []
        lg = []
        vm = []
        def flush_needed():
            a = any(d for d in lg); b = any(d for d in vm)
            return a, b
        for x in self.l:
            i = Ins(x)
            if i.kind in ("label", "branch", "end"):
                nl = nv = None
                for k in range(len(lg)):
                    if lg[k]: nl = len(lg) - 1 - k
                for k in range(len(vm)):
                    if vm[k]: nv = len(vm) - 1 - k
                if i.kind != "end":
                    if "KEEPVM" in x: nv = None
                    if "KEEPLG" in x: nl = None
                    if nl is not None: out.append(f"s_waitcnt lgkmcnt({min(nl,15)}) ; auto@cf"); lg = lg[len(lg) - nl:] if nl else []
                    if nv is not None: out.append(f"s_waitcnt vmcnt({min(nv,63)}) ; auto@cf"); vm = vm[len(vm) - nv:] if nv else []
                out.append(x)
                if i.kind == "label":
                    if "KEEPVM" not in x: vm = []
                    if "KEEPLG" not in x: lg = []
                continue
            if i.op == "s_waitcnt":
                m = re.search(r"lgkmcnt\((\d+)\)", x)
                if m:
                    n = int(m.group(1)); lg = lg[len(lg) - n:] if n and n < len(lg) else ([] if n == 0 else lg)
                m = re.search(r"vmcnt\((\d+)\)", x)
                if m:
                    n = int(m.group(1)); vm = vm[len(vm) - n:] if n and n < len(vm) else ([] if n == 0 else vm)
                out.append(x); continue
            touch = set(i.rd) | set(i.wr)
            nl = nv = None
            for k in range(len(lg)):
                if lg[k] & touch: nl = len(lg) - 1 - k
            for k in range(len(vm)):
                if vm[k] & touch: nv = len(vm) - 1 - k
            if nl is not None or nv is not None:
                s = "s_waitcnt"
                if nv is not None: s += f" vmcnt({min(nv,63)})"; vm = vm[len(vm) - nv:] if nv else []
                if nl is not None: s += f" lgkmcnt({min(nl,15)})"; lg = lg[len(lg) - nl:] if nl else []
                out.append(s + " ; auto")
            if i.kind == "ds": lg.append(set(i.dst))
            if i.kind == "smem":
                assert not any(lg), "smem mixed with pending ds"
            if i.kind == "vmem": vm.append(set(i.dst) if not (i.wide_store or "NOTRACK" in x) else set())
            out.append(x)
        self.l = out
    def hazards(self):
        changed = True
        while changed:
            changed = False
            ins = [Ins(x) for x in self.l]
            lab = {i.label: k for k, i in enumerate(ins) if i.kind == "label"}
            preds = [[] for _ in ins]
            for k, i in enumerate(ins):
                if i.kind == "branch" and i.target in lab: preds[lab[i.target]].append(k)
                if k + 1 < len(ins) and i.kind != "end" and i.op != "s_branch": preds[k + 1].append(k)
            for k, c in enumerate(ins):
                if c.kind not in ("valu", "mfma", "ds", "vmem"): continue
                worst = 0
                stack = [(p, 0) for p in preds[k]]
                seen = {}
                while stack:
                    p, d = stack.pop()
                    if d >= MAXW: continue
                    if seen.get(p, 99) <= d: continue
                    seen[p] = d
                    pi = ins[p]
                    n = need(pi, c) if pi.kind in ("valu", "mfma", "salu", "vmem") else 0
                    if n - d > worst: worst = n - d
                    w = 0 if pi.kind in ("label", "none") else pi.nopn
                    for q in preds[p]: stack.append((q, d + w))
                if worst > 0:
                    self.l.insert(k, f"s_nop {worst-1} ; hz")
                    changed = True
                    break
        return self
    def finish(self):
        self.auto_wait()
        self.hazards_fast()
        return self.text()
    def hazards_fast(self):
        for _ in range(50):
            ins = [Ins(x) for x in self.l]
            lab = {i.label: k for k, i in enumerate(ins) if i.kind == "label"}
            preds = [[] for _ in ins]
            for k, i in enumerate(ins):
                if i.kind == "branch" and i.target in lab: preds[lab[i.target]].append(k)
                if k + 1 < len(ins) and i.kind != "end" and i.op != "s_branch": preds[k + 1].append(k)
            extra = [0] * len(ins)
            anyc = False
            for k, c in enumerate(ins):
                if c.kind not in ("valu", "mfma", "ds", "vmem"): continue
                worst = 0
                stack = [(p, 0) for p in preds[k]]
                seen = {}
                while stack:
                    p, d = stack.pop()
                    if d >= MAXW: continue
                    if seen.get(p, 99) <= d: continue
                    seen[p] = d
                    pi = ins[p]
                    n = need(pi, c) if pi.kind in ("valu", "mfma", "salu", "vmem") else 0
                    if n - d > worst: worst = n - d
                    w = (0 if pi.kind in ("label", "none") else pi.nopn) + (extra[p] if p < k else 0)
                    for q in preds[p]: stack.append((q, d + w))
                if worst > 0:
                    extra[k] = worst; anyc = True
            if not anyc: return
            out = []
            for k, x in enumerate(self.l):
                if extra[k]: out.append(f"s_nop {extra[k]-1} ; hz")
                out.append(x)
            self.l = out
        raise RuntimeError("hazard fixpoint not reached")
```

```python
import sys, math, struct
from asmlib import *

def f2u(x): return struct.unpack("<I", struct.pack("<f", x))[0]
C_SCALE = math.log2(math.e) / math.sqrt(128.0)
T_LOG2 = 8.0
WOT_OFF = 16 * 1024 * 1024
UNIT = 16384
NUNIT = 5

def vr(a, n=1): return f"v{a}" if n == 1 else f"v[{a}:{a+n-1}]"
def sr(a, n=1): return f"s{a}" if n == 1 else f"s[{a}:{a+n-1}]"

def interleave(A, mf, fill, lead=0):
    fill = list(fill)
    for _ in range(min(lead, len(fill))): A(fill.pop(0))
    n = len(mf)
    tot = len(fill)
    done = 0
    for i, m in enumerate(mf):
        A(m)
        upto = (tot * (i + 1)) // n
        while done < upto:
            A(fill[done]); done += 1

def make_srd(A, d, lo, hi, off_s, size):
    if off_s is None:
        A(f"s_mov_b32 s{d}, s{lo}\ns_and_b32 s{d+1}, s{hi}, 0xffff")
    else:
        A(f"s_add_u32 s{d}, s{lo}, s{off_s}\ns_addc_u32 s{d+1}, s{hi}, 0\ns_and_b32 s{d+1}, s{d+1}, 0xffff")
    if isinstance(size, str): A(f"s_mov_b32 s{d+2}, {size}")
    else: A(f"s_mov_b32 s{d+2}, {hex(size)}")
    A(f"s_mov_b32 s{d+3}, 0x20000")

STAMP = False
OPT = {}
STAMP_OFF = 24 * 1024 * 1024
def stamp(A, idx):
    if STAMP and not OPT.get("cyc"): A(f"s_memrealtime s[{64+2*idx}:{65+2*idx}]")
def cstamp(A, idx):
    if OPT.get("cyc"):
        A(f"s_waitcnt lgkmcnt(0)\ns_memtime s[{64+2*idx}:{65+2*idx}]\ns_waitcnt lgkmcnt(0)")
def stamp_store(A, n, srd, wave_s, base_extra=0):
    if not STAMP: return
    A("s_waitcnt lgkmcnt(0)")
    A(f"s_cmp_lg_u32 s{wave_s}, 0\ns_cbranch_scc1 LST_{base_extra}")
    A(f"s_lshl_b32 s90, s2, 6\ns_add_u32 s90, s90, {STAMP_OFF + base_extra}")
    A("v_mov_b32 v2, 0")
    A("v_cmp_eq_u32 vcc, 0, v0\ns_and_saveexec_b64 s[92:93], vcc")
    for i in range(n):
        A(f"v_mov_b32 v4, s{64+2*i}\nv_mov_b32 v5, s{65+2*i}")
        A(f"buffer_store_dwordx2 v[4:5], v2, s[{srd}:{srd+3}], s90 offen offset:{8*i}")
        A("s_nop 1")
    A(f"s_mov_b64 exec, s[92:93]")
    A(f"LST_{base_extra}:")

def gen_attn(A, nt=" nt"):
    S_WAVE, S_B, S_H, S_T0, S_T1, S_T2 = 3, 32, 33, 34, 35, 36
    S_C, S_POSK, S_POSV, S_UK, S_UV, S_UI, S_IT, S_WOFF, S_TC = 37, 38, 39, 40, 41, 42, 43, 44, 45
    SK, SV, SX, SWQ, SWS, SWO = 8, 12, 16, 20, 24, 28
    V_LANE = 1
    V_KD = 2
    V_VD = 6
    V_KA = 8
    V_VA = 16
    V_KAc = 20
    V_VAc = 28
    Q = 32
    O = 64
    S0, S1 = 128, 144
    P0, P1 = 160, 168
    F0, F1 = 176, 208
    V_M, V_THR, V_NMC, V_L0, V_L1, V_T, V_T2, V_T3 = 240, 241, 242, 243, 244, 245, 246, 247
    V_WD = 248
    V_XD = 249
    V_WA = 250
    V_OST = 254
    V_TMP = 255

    A(f"s_cmp_ge_u32 s2, 512\ns_cbranch_scc1 L1_end")
    stamp(A, 0)
    A("s_load_dwordx16 s[48:63], s[0:1], 0")
    A(f"v_and_b32 v{V_LANE}, 63, v0")
    A(f"v_lshrrev_b32 v{V_TMP}, 6, v0")
    A(f"v_readfirstlane_b32 s{S_WAVE}, v{V_TMP}")
    A(f"s_and_b32 s{S_T0}, s2, 255")
    A(f"s_and_b32 s{S_H}, s{S_T0}, 31")
    A(f"s_lshr_b32 s{S_B}, s{S_T0}, 5")
    A(f"s_lshr_b32 s{S_T1}, s2, 8\ns_lshl_b32 s{S_T1}, s{S_T1}, 3\ns_add_u32 s{S_B}, s{S_B}, s{S_T1}")
    L = V_LANE
    A(f"v_lshrrev_b32 v{V_T}, 4, v{L}")
    A(f"v_and_b32 v{V_T2}, 15, v{L}")
    for j in range(4):
        A(f"v_add_u32 v{V_T3}, {4*j}, v{V_T}")
        A(f"v_xor_b32 v{V_T3}, v{V_T3}, v{V_T2}")
        if OPT.get("noswz"): A(f"v_mov_b32 v{V_T3}, v{V_T2}")
        A(f"v_lshlrev_b32 v{V_T3}, 4, v{V_T3}")
        A(f"v_lshl_add_u32 v{V_KD+j}, v{V_T}, 8, v{V_T3}")
    A(f"v_lshlrev_b32 v{V_T3}, 2, v{V_T}")
    A(f"v_xor_b32 v{V_T3}, v{V_T3}, v{V_T2}")
    A(f"v_lshlrev_b32 v{V_T3}, 4, v{V_T3}")
    A(f"v_lshl_add_u32 v{V_VD}, v{V_T}, 8, v{V_T3}")
    A(f"v_lshl_add_u32 v{V_WD}, v{V_T}, 13, v{V_T3}")
    A(f"v_lshl_add_u32 v{V_OST}, v{V_T}, 10, v{V_T3}")
    V_XD2 = 7
    A(f"v_lshrrev_b32 v{V_T}, 3, v{L}")
    A(f"v_and_b32 v{V_T2}, 7, v{L}")
    A(f"v_lshrrev_b32 v{V_T3}, 1, v{V_T}")
    A(f"v_xor_b32 v{V_T3}, v{V_T3}, v{V_T2}")
    A(f"v_lshlrev_b32 v{V_T3}, 4, v{V_T3}")
    A(f"v_lshl_add_u32 v{V_XD}, v{V_T}, 10, v{V_T3}")
    A(f"v_xor_b32 v{V_XD2}, 64, v{V_XD}")
    A(f"v_and_b32 v{V_T}, 31, v{L}")
    A(f"v_lshrrev_b32 v{V_T2}, 5, v{L}")
    A(f"v_and_b32 v{V_T3}, 15, v{L}")
    A(f"v_xor_b32 v{V_T3}, v{V_T3}, v{V_T2}")
    A(f"v_lshlrev_b32 v{V_T3}, 4, v{V_T3}")
    A(f"v_lshl_add_u32 v{V_T3}, v{V_T}, 8, v{V_T3}")
    for s in range(8):
        A(f"v_xor_b32 v{V_KA+s}, {32*s}, v{V_T3}")
    A(f"v_lshrrev_b32 v{V_T3}, 1, v{V_T}")
    A(f"v_and_b32 v{V_T3}, 7, v{V_T3}")
    A(f"v_xor_b32 v{V_T3}, v{V_T3}, v{V_T2}")
    A(f"v_lshlrev_b32 v{V_T3}, 4, v{V_T3}")
    A(f"v_lshl_add_u32 v{V_T3}, v{V_T}, 7, v{V_T3}")
    A(f"s_lshl_b32 s{S_WOFF}, s{S_WAVE}, 12")
    A(f"v_add_u32 v{V_T3}, s{S_WOFF}, v{V_T3}")
    V_XA = V_KAc
    for s in range(4):
        A(f"v_xor_b32 v{V_XA+s}, {32*s}, v{V_T3}")
    A(f"v_bfe_u32 v{V_T}, v{L}, 2, 2")
    A(f"v_and_b32 v{V_T2}, 1, v{L}")
    A(f"v_bfe_u32 v{V_T3}, v{L}, 1, 1")
    A(f"v_lshl_add_u32 v{V_T2}, v{V_T2}, 1, v{V_T3}")
    A(f"v_lshlrev_b32 v{V_T2}, 3, v{V_T2}")
    A(f"v_bfe_u32 v{V_T3}, v{L}, 4, 1")
    A(f"v_lshl_add_u32 v{V_T2}, v{V_T3}, 5, v{V_T2}")
    A(f"v_lshl_add_u32 v{V_T2}, v{V_T}, 8, v{V_T2}")
    A(f"v_lshrrev_b32 v{V_T3}, 5, v{L}")
    for blk in range(4):
        A(f"v_xor_b32 v{V_TMP}, {blk}, v{V_T}")
        A(f"v_lshl_add_u32 v{V_TMP}, v{V_TMP}, 6, v{V_T2}")
        A(f"v_lshl_add_u32 v{V_VA+blk}, v{V_T3}, 10, v{V_TMP}")
        A(f"v_lshl_add_u32 v{V_WA+blk}, v{V_T3}, 11, v{V_TMP}")
    A("s_waitcnt lgkmcnt(0)")
    A(f"s_lshl_b32 s{S_T0}, s{S_B}, 5\ns_add_u32 s{S_T0}, s{S_T0}, s{S_H}")
    A(f"s_lshl_b32 s{S_T1}, s{S_T0}, 18")
    make_srd(A, SK, 50, 51, S_T1, 262144)
    make_srd(A, SV, 52, 53, S_T1, 262144)
    A(f"s_lshl_b32 s{S_T1}, s{S_B}, 17")
    make_srd(A, SX, 48, 49, S_T1, 131072)
    A(f"s_lshl_b32 s{S_T1}, s{S_H}, 8")
    A(f"s_sub_u32 s{S_T2}, {4096*1024}, s{S_T1}")
    make_srd(A, SWQ, 54, 55, S_T1, f"s{S_T2}")
    make_srd(A, SWS, 62, 63, None, 32 * 1024 * 1024)
    make_srd(A, SWO, 56, 57, None, 4096 * 1024)
    A(f"s_mov_b32 s{S_C}, {hex(f2u(C_SCALE))}")
    A(f"s_mov_b32 s{S_TC}, {hex(f2u(T_LOG2 / C_SCALE))}")

    A(f"s_cmp_lt_u32 s2, 256\ns_cbranch_scc1 L1_nowot")
    A(f"s_sub_u32 s{S_T0}, s2, 256")
    A(f"s_lshr_b32 s{S_T1}, s{S_T0}, 2")
    A(f"s_and_b32 s{S_T0}, s{S_T0}, 3")
    A(f"s_lshl_b32 s{S_T2}, s{S_T1}, 16")
    A(f"s_lshl_b32 s46, s{S_T0}, 8\ns_add_u32 s{S_T2}, s{S_T2}, s46")
    A(f"s_lshl_b32 s46, s{S_WAVE}, 14\ns_add_u32 s{S_T2}, s{S_T2}, s46")
    for j in range(4):
        A(f"s_add_u32 m0, s{S_WOFF}, {j*1024}")
        A(f"s_add_u32 s46, s{S_T2}, {j*4096}")
        A(f"buffer_load_dwordx4 v{V_OST}, s[{SWO}:{SWO+3}], s46 offen lds")
    A("s_waitcnt vmcnt(0)\ns_barrier")
    A(f"v_bfe_u32 v{V_T}, v{L}, 2, 2")
    A(f"v_xor_b32 v{V_T2}, s{S_WAVE}, v{V_T}")
    A(f"v_xor_b32 v{V_T}, v{V_T}, v{V_T2}")
    A(f"v_bfe_u32 v{V_T}, v{L}, 2, 2")
    A(f"v_sub_u32 v{V_T2}, v{V_T2}, v{V_T}")
    A(f"v_lshl_add_u32 v{V_T2}, v{V_T2}, 6, v{V_WA}")
    for s in range(4):
        A(f"ds_read_b64_tr_b16 v[{F0+4*s}:{F0+4*s+1}], v{V_T2} offset:{s*4096}")
        A(f"ds_read_b64_tr_b16 v[{F0+4*s+2}:{F0+4*s+3}], v{V_T2} offset:{s*4096+1024}")
    A(f"s_lshl_b32 s{S_T0}, s{S_T0}, 2\ns_add_u32 s{S_T0}, s{S_T0}, s{S_WAVE}\ns_lshl_b32 s{S_T0}, s{S_T0}, 18")
    A(f"s_lshl_b32 s{S_T1}, s{S_T1}, 12\ns_add_u32 s{S_T0}, s{S_T0}, s{S_T1}\ns_add_u32 s{S_T0}, s{S_T0}, {WOT_OFF}")
    A(f"v_lshlrev_b32 v{V_T}, 4, v{L}")
    for s in range(4):
        A(f"buffer_store_dwordx4 v[{F0+4*s}:{F0+4*s+3}], v{V_T}, s[{SWS}:{SWS+3}], s{S_T0} offen offset:{s*1024}")
    A("s_barrier")
    A("L1_nowot:")
    stamp(A, 1)

    def dma_K(unit_expr_s):
        A(f"s_add_u32 m0, s{unit_expr_s}, s{S_WOFF}")
        for j in range(4):
            A(f"buffer_load_dwordx4 v{V_KD+j}, s[{SK}:{SK+3}], s{S_POSK} offen offset:{j*1024}{nt} lds")
        A(f"s_add_u32 s{S_POSK}, s{S_POSK}, {UNIT}")
    def dma_V(unit_expr_s):
        A(f"s_add_u32 m0, s{unit_expr_s}, s{S_WOFF}")
        for j in range(4):
            A(f"buffer_load_dwordx4 v{V_VD}, s[{SV}:{SV+3}], s{S_POSV} offen offset:{j*1024}{nt} lds")
        A(f"s_add_u32 s{S_POSV}, s{S_POSV}, {UNIT}")
    def dma_chunk(c):
        uw = ((2 * c) % 4) * UNIT; ux = ((2 * c + 1) % 4) * UNIT
        A(f"s_lshl_b32 s{S_T0}, s{S_WAVE}, 17")
        for j in range(4):
            A(f"s_add_u32 m0, s{S_WOFF}, {uw + j*1024}")
            A(f"s_add_u32 s{S_T1}, s{S_T0}, {(64*c + 4*j)*8192}")
            A(f"buffer_load_dwordx4 v{V_WD}, s[{SWQ}:{SWQ+3}], s{S_T1} offen lds")
        A(f"s_lshl_b32 s{S_T0}, s{S_WAVE}, 15")
        for j in range(4):
            A(f"s_add_u32 m0, s{S_WOFF}, {ux + j*1024}")
            A(f"s_add_u32 s{S_T1}, s{S_T0}, {j*8192 + c*128}")
            A(f"buffer_load_dwordx4 v{V_XD if j % 2 == 0 else V_XD2}, s[{SX}:{SX+3}], s{S_T1} offen lds")
    A(f"s_mov_b32 s{S_POSK}, s{S_WOFF}\ns_mov_b32 s{S_POSV}, s{S_WOFF}")
    dma_chunk(0)
    dma_chunk(1)
    A(f"s_mov_b32 s{S_UI}, {4*UNIT}")
    dma_K(S_UI)
    XF = S0
    for c in range(8):
        if c == 0: w = 12
        elif c == 1: w = 4 + 8
        elif c < 7: w = 8
        else: w = 8
        if c == 7: w = 0 + 0
        A(f"s_waitcnt vmcnt({w})\ns_barrier")
        uw = ((2 * c) % 4) * UNIT; ux = ((2 * c + 1) % 4) * UNIT
        rd = []
        for s in range(4):
            rd.append(f"ds_read_b128 v[{XF+4*s}:{XF+4*s+3}], v{V_XA+s} offset:{ux}")
            for blk in range(4):
                d = F0 + (s * 4 + blk) * 4
                rd.append(f"ds_read_b64_tr_b16 v[{d}:{d+1}], v{V_WA+blk} offset:{uw + s*4096}")
                rd.append(f"ds_read_b64_tr_b16 v[{d+2}:{d+3}], v{V_WA+blk} offset:{uw + s*4096 + 1024}")
        for r in rd: A(r)
        for s in range(4):
            for blk in range(4):
                d = F0 + (s * 4 + blk) * 4
                cc = "0" if (c == 0 and s == 0) else f"v[{O+16*blk}:{O+16*blk+15}]"
                A(f"v_mfma_f32_32x32x16_bf16 v[{O+16*blk}:{O+16*blk+15}], v[{d}:{d+3}], v[{XF+4*s}:{XF+4*s+3}], {cc}")
        if c + 2 < 8:
            A("s_barrier")
            dma_chunk(c + 2)
    A("s_barrier")
    for p, u in ((1, 0), (2, 1), (3, 2)):
        A(f"s_mov_b32 s{S_UI}, {u*UNIT}")
        (dma_V if p % 2 else dma_K)(S_UI)
    stamp(A, 2)
    for blk in range(4):
        for j in range(8):
            A(f"v_cvt_pk_bf16_f32 v{Q+blk*8+j}, v{O+16*blk+2*j}, v{O+16*blk+2*j+1}")
    for r in range(64):
        A(f"v_mov_b32 v{O+r}, 0")
    A(f"v_mov_b32 v{V_M}, 0xff7fffff\nv_mov_b32 v{V_THR}, 0xff7fffff\nv_mov_b32 v{V_NMC}, 0")
    A(f"v_mov_b32 v{V_L0}, 0\nv_mov_b32 v{V_L1}, 0")
    A(f"s_mov_b32 s{S_UI}, {3*UNIT}")
    dma_K(S_UI)
    A(f"s_mov_b32 s{S_UK}, {4*UNIT}\ns_mov_b32 s{S_UV}, 0\ns_mov_b32 s{S_IT}, 0")
    A("s_waitcnt vmcnt(12)\ns_barrier")
    stamp(A, 3)
    A("s_waitcnt lgkmcnt(0)")
    A("s_branch L1_body")
    A("L1_loop:")
    cstamp(A, 0)
    A("s_waitcnt vmcnt(4)\ns_barrier")
    cstamp(A, 1)
    if not OPT.get("nodma"):
        dma_V(S_UK)
        dma_K(S_UV)
    for s in (S_UK, S_UV):
        A(f"s_add_u32 s{s}, s{s}, {2*UNIT}\ns_cmp_ge_u32 s{s}, {NUNIT*UNIT}\ns_cselect_b32 s{S_T0}, {NUNIT*UNIT}, 0\ns_sub_u32 s{s}, s{s}, s{S_T0}")
    A("L1_body:")
    if OPT.get("nocomp"):
        A(f"s_add_u32 s{S_IT}, s{S_IT}, 1\ns_cmp_lt_u32 s{S_IT}, 16\ns_cbranch_scc1 L1_loop")
        A("s_branch L1_epi")
    for s in range(8): A(f"v_add_u32 v{V_KAc+s}, s{S_UK}, v{V_KA+s}")
    for s in range(8): A(f"ds_read_b128 v[{F0+4*s}:{F0+4*s+3}], v{V_KAc+s}")
    for s in range(8): A(f"ds_read_b128 v[{F1+4*s}:{F1+4*s+3}], v{V_KAc+s} offset:8192")
    for b in range(4): A(f"v_add_u32 v{V_VAc+b}, s{S_UV}, v{V_VA+b}")
    def qk(F, S):
        return [f"v_mfma_f32_32x32x16_bf16 v[{S}:{S+15}], v[{F+4*s}:{F+4*s+3}], v[{Q+4*s}:{Q+4*s+3}], " + ("0" if s == 0 else f"v[{S}:{S+15}]") for s in range(8)]
    def vread(F, half):
        r = []
        for s in range(2):
            for b in range(4):
                d = F + (s * 4 + b) * 4
                off = half * 8192 + s * 4096
                r.append(f"ds_read_b64_tr_b16 v[{d}:{d+1}], v{V_VAc+b} offset:{off}")
                r.append(f"ds_read_b64_tr_b16 v[{d+2}:{d+3}], v{V_VAc+b} offset:{off+2048}")
        return r
    def pv(F, P):
        return [f"v_mfma_f32_32x32x16_bf16 v[{O+16*b}:{O+16*b+15}], v[{F+(s*4+b)*4}:{F+(s*4+b)*4+3}], v[{P+4*s}:{P+4*s+3}], v[{O+16*b}:{O+16*b+15}]" for s in range(2) for b in range(4)]
    def smax(S):
        r = [f"v_max3_f32 v{V_T}, v{S}, v{S+1}, v{S+2}"]
        for i in range(3, 15, 2): r.append(f"v_max3_f32 v{V_T}, v{V_T}, v{S+i}, v{S+i+1}")
        r.append(f"v_max_f32 v{V_T}, v{V_T}, v{S+15}")
        r.append(f"v_cmp_gt_f32 vcc, v{V_T}, v{V_THR}")
        return r
    def sexp(S, P):
        r = []
        for i in range(0, 16, 2):
            r += [f"v_fma_f32 v{S+i}, v{S+i}, s{S_C}, v{V_NMC}", f"v_fma_f32 v{S+i+1}, v{S+i+1}, s{S_C}, v{V_NMC}",
                  f"v_exp_f32 v{S+i}, v{S+i}", f"v_exp_f32 v{S+i+1}, v{S+i+1}"]
            if i >= 2:
                r += [f"v_add_f32 v{V_L0}, v{V_L0}, v{S+i-2}", f"v_add_f32 v{V_L1}, v{V_L1}, v{S+i-1}",
                      f"v_cvt_pk_bf16_f32 v{P+(i-2)//2}, v{S+i-2}, v{S+i-1}"]
        r += [f"v_add_f32 v{V_L0}, v{V_L0}, v{S+14}", f"v_add_f32 v{V_L1}, v{V_L1}, v{S+15}",
              f"v_cvt_pk_bf16_f32 v{P+7}, v{S+14}, v{S+15}"]
        return r
    def rescale():
        A(f"v_mov_b32 v{V_T2}, v{V_T}")
        A(f"v_permlane32_swap_b32 v{V_T}, v{V_T2}")
        A(f"v_max3_f32 v{V_T}, v{V_T}, v{V_T2}, v{V_M}")
        A(f"v_sub_f32 v{V_T2}, v{V_M}, v{V_T}")
        A(f"v_mul_f32 v{V_T2}, s{S_C}, v{V_T2}")
        A(f"v_exp_f32 v{V_T2}, v{V_T2}")
        A(f"v_mov_b32 v{V_M}, v{V_T}")
        A(f"v_add_f32 v{V_THR}, s{S_TC}, v{V_T}")
        A(f"v_mul_f32 v{V_NMC}, s{S_C}, v{V_T}")
        A(f"v_sub_f32 v{V_NMC}, 0, v{V_NMC}")
        A(f"v_mul_f32 v{V_L0}, v{V_L0}, v{V_T2}\nv_mul_f32 v{V_L1}, v{V_L1}, v{V_T2}")
        for r in range(64): A(f"v_mul_f32 v{O+r}, v{O+r}, v{V_T2}")
    cstamp(A, 2)
    for m in qk(F0, S0): A(m)
    cstamp(A, 3)
    q1 = qk(F1, S1)
    vr0 = vread(F0, 0)
    A(q1[0])
    for r in vr0[:12]: A(r)
    for r in smax(S0): A(r)
    A("s_cbranch_vccnz L1_rare0 ; KEEPLG")
    A("L1_back0: ; KEEPLG")
    interleave(A, q1[1:], vr0[12:] + sexp(S0, P0))
    cstamp(A, 4)
    vr1 = vread(F1, 1)
    for r in smax(S1): A(r)
    A("s_cbranch_vccnz L1_rare1")
    interleave(A, pv(F0, P0), vr1 + sexp(S1, P1))
    A("L1_back1:")
    cstamp(A, 5)
    for m in pv(F1, P1): A(m)
    cstamp(A, 6)
    A(f"s_add_u32 s{S_IT}, s{S_IT}, 1\ns_cmp_lt_u32 s{S_IT}, 16\ns_cbranch_scc1 L1_loop")
    A("L1_epi:")
    stamp(A, 4)
    A(f"v_add_f32 v{V_L0}, v{V_L0}, v{V_L1}")
    A(f"v_mov_b32 v{V_T2}, v{V_L0}")
    A(f"v_permlane32_swap_b32 v{V_L0}, v{V_T2}")
    A(f"v_add_f32 v{V_L0}, v{V_L0}, v{V_T2}")
    A(f"v_rcp_f32 v{V_L0}, v{V_L0}")
    A(f"s_lshl_b32 s{S_T0}, s{S_B}, 5\ns_add_u32 s{S_T0}, s{S_T0}, s{S_H}\ns_lshl_b32 s{S_T0}, s{S_T0}, 2\ns_add_u32 s{S_T0}, s{S_T0}, s{S_WAVE}\ns_lshl_b32 s{S_T0}, s{S_T0}, 13")
    A(f"s_add_u32 s{S_T1}, s{S_T0}, 4096")
    A(f"v_lshlrev_b32 v{V_OST}, 4, v{V_LANE}")
    for s in range(8):
        for j in range(8): A(f"v_mul_f32 v{O+8*s+j}, v{O+8*s+j}, v{V_L0}")
        for j in range(4): A(f"v_cvt_pk_bf16_f32 v{F0+4*s+j}, v{O+8*s+2*j}, v{O+8*s+2*j+1}")
        A(f"buffer_store_dwordx4 v[{F0+4*s}:{F0+4*s+3}], v{V_OST}, s[{SWS}:{SWS+3}], s{S_T0 if s < 4 else S_T1} offen offset:{(s%4)*1024}")
    if STAMP:
        A("s_waitcnt vmcnt(0)")
        stamp(A, 5)
        stamp_store(A, 7, SWS, S_WAVE)
    A("L1_end:\ns_endpgm")
    A("L1_rare0:")
    A("s_waitcnt lgkmcnt(0)")
    rescale()
    A("s_branch L1_back0")
    A("L1_rare1:")
    for m in pv(F0, P0): A(m)
    rescale()
    for r in vr1 + sexp(S1, P1): A(r)
    A("s_branch L1_back1")

def gen_oproj(A):
    SWS, SOUT = 8, 12
    S_WAVE, S_B, S_NS, S_T0, S_T1, S_OA, S_WA = 3, 16, 17, 18, 19, 20, 21
    ACC = 32
    BUF = 96; DEPTH = 6
    A("s_cmp_ge_u32 s2, 256\ns_cbranch_scc1 L2_end")
    stamp(A, 0)
    A("s_load_dwordx2 s[4:5], s[0:1], 56\ns_load_dwordx2 s[6:7], s[0:1], 40")
    A("v_and_b32 v1, 63, v0\nv_lshrrev_b32 v2, 6, v0\nv_readfirstlane_b32 s3, v2")
    A(f"s_and_b32 s{S_B}, s2, 7\ns_lshl_b32 s{S_B}, s{S_B}, 1\ns_bfe_u32 s{S_T0}, s2, 0x10003\ns_add_u32 s{S_B}, s{S_B}, s{S_T0}")
    A(f"s_lshr_b32 s{S_NS}, s2, 4")
    A("v_lshlrev_b32 v2, 4, v1")
    for qt in range(4): A(f"v_add_u32 v{4+qt}, {qt*8192}, v2")
    A("s_waitcnt lgkmcnt(0)")
    make_srd(A, SWS, 4, 5, None, 32 * 1024 * 1024)
    make_srd(A, SOUT, 6, 7, None, 2 * 1024 * 1024)
    A(f"s_lshl_b32 s{S_OA}, s{S_B}, 20\ns_lshl_b32 s{S_T0}, s3, 18\ns_add_u32 s{S_OA}, s{S_OA}, s{S_T0}")
    A(f"s_lshl_b32 s{S_WA}, s{S_NS}, 18\ns_lshl_b32 s{S_T0}, s3, 16\ns_add_u32 s{S_WA}, s{S_WA}, s{S_T0}\ns_add_u32 s{S_WA}, s{S_WA}, {WOT_OFF}")
    def load(k):
        h, s = k // 8, k % 8
        d = BUF + (k % DEPTH) * 20
        if k % 4 == 0:
            A(f"s_add_u32 s{S_T0}, s{S_OA}, {h*32768 + (s//4)*4096}")
            A(f"s_add_u32 s{S_T1}, s{S_WA}, {(k//4)*4096}")
        A(f"buffer_load_dwordx4 v[{d}:{d+3}], v2, s[{SWS}:{SWS+3}], s{S_T1} offen offset:{(k%4)*1024}")
        for qt in range(4):
            A(f"buffer_load_dwordx4 v[{d+4+4*qt}:{d+7+4*qt}], v{4+qt}, s[{SWS}:{SWS+3}], s{S_T0} offen offset:{(k%4)*1024}")
    for k in range(DEPTH - 1): load(k)
    for k in range(64):
        if k + DEPTH - 1 < 64: load(k + DEPTH - 1)
        d = BUF + (k % DEPTH) * 20
        for qt in range(4):
            cc = "0" if k == 0 else f"v[{ACC+16*qt}:{ACC+16*qt+15}]"
            A(f"v_mfma_f32_32x32x16_bf16 v[{ACC+16*qt}:{ACC+16*qt+15}], v[{d}:{d+3}], v[{d+4+4*qt}:{d+7+4*qt}], {cc}")
    stamp(A, 1)
    A("s_waitcnt lgkmcnt(0)")
    A(f"s_lshl_b32 s{S_T0}, s3, 14\nv_add_u32 v8, s{S_T0}, v2")
    for qt in range(4):
        for g in range(4):
            A(f"ds_write_b128 v8, v[{ACC+16*qt+4*g}:{ACC+16*qt+4*g+3}] offset:{(qt*4+g)*1024}")
    A("s_waitcnt lgkmcnt(0)\ns_barrier")
    A(f"s_lshl_b32 s{S_T0}, s3, 12\nv_add_u32 v8, s{S_T0}, v2")
    for w in range(4):
        for g in range(4):
            A(f"ds_read_b128 v[{BUF+(w*4+g)*4}:{BUF+(w*4+g)*4+3}], v8 offset:{w*16384+g*1024}")
    for r in range(16):
        A(f"v_add_f32 v{BUF+r}, v{BUF+r}, v{BUF+16+r}")
        A(f"v_add_f32 v{BUF+32+r}, v{BUF+32+r}, v{BUF+48+r}")
    for r in range(16):
        A(f"v_add_f32 v{BUF+r}, v{BUF+r}, v{BUF+32+r}")
    for j in range(8):
        A(f"v_cvt_pk_bf16_f32 v{ACC+j}, v{BUF+2*j}, v{BUF+2*j+1}")
    A("v_and_b32 v9, 31, v1\nv_lshlrev_b32 v9, 10, v9\nv_lshrrev_b32 v10, 5, v1\nv_lshl_add_u32 v9, v10, 4, v9")
    A(f"s_lshl_b32 s{S_T0}, s{S_B}, 17\ns_lshl_b32 s{S_T1}, s3, 15\ns_add_u32 s{S_T0}, s{S_T0}, s{S_T1}\ns_lshl_b32 s{S_T1}, s{S_NS}, 6\ns_add_u32 s{S_T0}, s{S_T0}, s{S_T1}")
    A(f"buffer_store_dwordx4 v[{ACC}:{ACC+3}], v9, s[{SOUT}:{SOUT+3}], s{S_T0} offen")
    A(f"buffer_store_dwordx4 v[{ACC+4}:{ACC+7}], v9, s[{SOUT}:{SOUT+3}], s{S_T0} offen offset:32")
    if STAMP:
        A("s_waitcnt vmcnt(0)")
        stamp(A, 2)
        stamp_store(A, 3, SWS, 3, 65536)
    A("L2_end:\ns_endpgm")

def build():
    A1 = Asm(); gen_attn(A1)
    A2 = Asm(); gen_oproj(A2)
    t = header(["; @launch kernel=attn_kernel grid=(%d,1,1) block=(256,1,1) lds=81920" % OPT.get("nwg", 512),
                "; @launch kernel=oproj_kernel grid=(256,1,1) block=(256,1,1) lds=65536"])
    t += kstart("attn_kernel") + A1.finish() + kstart("oproj_kernel") + A2.finish()
    t += RODATA + kdesc("attn_kernel") + kdesc("oproj_kernel")
    return t

if __name__ == "__main__":
    STAMP = "stamp" in sys.argv[2:]
    for a in sys.argv[2:]:
        if "=" in a:
            k, v = a.split("="); OPT[k] = int(v)
    open(sys.argv[1] if len(sys.argv) > 1 else "v1.s", "w").write(build())
```

```python
import sys, math, struct
from asmlib import *
from gen1 import f2u, make_srd, interleave, C_SCALE

OPT = {}
STF = ['', ' nt', ' sc1', ' sc0 sc1', ' sc1 nt', ' sc0 sc1 nt', ' sc0']
MB = 1024 * 1024
STAMP_OFF = 36 * MB
PART_OFF, FO_OFF, FP_OFF, EP_OFF = 16 * MB, 32 * MB, 32 * MB + 32768, 32 * MB + 65536
DBIAS = 7.0
U = 16384
KU = [i * U for i in range(5)]
VU = [(5 + i) * U for i in range(5)]
NR = 3
WOFFS = [U, 2 * U, 0]
XUN = [KU[4], VU[4], VU[0]]
UA = (KU[4], VU[4]); UC = (KU[3], VU[3]); UD = (KU[29 % NR], KU[30 % NR]); O1U = (VU[30 % NR], KU[31 % NR])
MF = "v_mfma_f32_16x16x32_bf16"

S_WAVE, S_W4, S_WOFF, S_ROLE, S_NON = 3, 4, 5, 6, 7
SK, SV, SX, SWQ, SWS, SWO = 8, 12, 16, 20, 24, 28
S_B, S_H0, S_HG, S_FAST = 32, 33, 34, 35
S_T0, S_T1, S_T2, S_T3 = 36, 37, 38, 39
S_KB0, S_KB1, S_XB, S_WQB, S_WM, S_XM = 40, 41, 42, 43, 44, 45
S_IT, S_KIDX, S_VIDX, S_D, S_ITEM = 46, 47, 64, 65, 66
S_C, S_MU, S_ONE, S_KH, S_RET = 68, 69, 70, 71, 72
SOUT = 76
S_HK = 80

def r4(a): return f"v[{a}:{a+3}]"
def r2(a): return f"v[{a}:{a+1}]"
def cost(i):
    return sum(8 if x.startswith("v_exp") else 4 for x in i.split("\n"))
def sched(A, mf, reads, valu, rgap=1, pre=()):
    reads = list(reads); valu = list(valu)
    tot = sum(map(cost, reads)) + sum(map(cost, valu))
    n = len(mf); used = 0
    for x in pre: A(x)
    for i, m in enumerate(mf):
        A(m)
        target = tot * (i + 1) / n
        k = 0
        while True:
            if reads and k < rgap and (k == 0 or used + 4 <= target + 4):
                x = reads.pop(0); k += 1
            elif valu and (used + cost(valu[0]) / 2 <= target or i == n - 1):
                x = valu.pop(0)
            elif reads and i == n - 1:
                x = reads.pop(0)
            else: break
            A(x); used += cost(x)
    assert not reads and not valu

TRV = 23
def tr(A, lane, level=1):
    if OPT.get("trace", 0) >= level: A(f"s_memrealtime s[94:95]\ns_waitcnt lgkmcnt(0)\nv_writelane_b32 v{TRV}, s94, {lane}")
def tr_store(A, lab):
    if not OPT.get("trace"): return
    A(f"s_lshl_b32 s90, s2, 8\ns_add_u32 s90, s90, {STAMP_OFF + 131072}\nv_lshlrev_b32 v2, 2, v1")
    A(f"s_cmp_lg_u32 s{S_W4}, 0\ns_cbranch_scc1 {lab}\nbuffer_store_dword v{TRV}, v2, s[{SWS}:{SWS+3}], s90 offen\n{lab}:")

L = 1
KA, VA, L0, LH = 2, 6, 14, 24
T, T2, T3, T4, OST = 16, 17, 18, 19, 20
Q, O, S0, S1, P0, P1, FA, FB, NM = 32, 64, 128, 144, 160, 168, 176, 208, 240
KD, VD, WD, XD, WOD, KH = 160, 164, 166, 168, 170, 172
XA0, XA1, WA = 26, 28, 240
TRB = 248

class VM:
    def __init__(self, A): self.A = A; self.out = []
    def issued(self, tag, n=1): self.out.extend([tag] * n)
    def wait(self, *tags):
        last = max((i for i, t in enumerate(self.out) if t in tags), default=None)
        if last is None: return
        n = len(self.out) - 1 - last
        assert n <= 63
        self.A(f"s_waitcnt vmcnt({n})")
        del self.out[:last + 1]

def gen_prologue(A):
    cf = STF[OPT.get("cf", 1)]
    A(f"s_cmp_ge_u32 s2, 256\ns_cbranch_scc1 L_end")
    if OPT.get("trace"): A("s_memrealtime s[92:93]")
    A("s_load_dwordx16 s[48:63], s[0:1], 0")
    A("v_and_b32 v1, 63, v0\nv_lshrrev_b32 v2, 6, v0")
    A(f"v_readfirstlane_b32 s{S_WAVE}, v2")
    A(f"v_lshrrev_b32 v{T}, 4, v{L}\nv_and_b32 v{T2}, 15, v{L}")
    A(f"v_lshlrev_b32 v{T3}, 1, v{T}\nv_xor_b32 v{T3}, v{T3}, v{T2}\nv_lshlrev_b32 v{T3}, 4, v{T3}")
    A(f"v_lshl_add_u32 v{WD}, v{T}, 13, v{T3}\nv_xor_b32 v{WD+1}, 128, v{WD}")
    A(f"v_lshl_add_u32 v{VD}, v{T}, 8, v{T3}\nv_xor_b32 v{VD+1}, 128, v{VD}\nv_lshl_add_u32 v{WOD}, v{T}, 10, v{T3}\nv_xor_b32 v{WOD+1}, 128, v{WOD}")
    A(f"v_lshrrev_b32 v{T4}, 3, v{L}\nv_and_b32 v{XD}, 7, v{L}\nv_lshrrev_b32 v{T3}, 1, v{T4}\nv_xor_b32 v{T3}, v{T3}, v{XD}")
    A(f"v_lshlrev_b32 v{T3}, 4, v{T3}\nv_lshl_add_u32 v{XD}, v{T4}, 10, v{T3}\nv_xor_b32 v{XD+1}, 64, v{XD}")
    A(f"s_and_b32 s{S_W4}, s{S_WAVE}, 3\ns_lshl_b32 s{S_WOFF}, s{S_W4}, 12\ns_lshr_b32 s{S_ROLE}, s{S_WAVE}, 2")
    A(f"s_bfe_u32 s{S_B}, s2, 0x10002\ns_lshl_b32 s{S_B}, s{S_B}, 3\ns_lshr_b32 s{S_T0}, s2, 5\ns_add_u32 s{S_B}, s{S_B}, s{S_T0}")
    A(f"s_and_b32 s{S_HG}, s2, 3\ns_lshl_b32 s{S_H0}, s{S_HG}, 3\ns_bfe_u32 s{S_T0}, s2, 0x20003\ns_lshl_b32 s{S_T0}, s{S_T0}, 1\ns_add_u32 s{S_H0}, s{S_H0}, s{S_T0}")
    A(f"s_add_u32 s{S_WQB}, s{S_H0}, s{S_ROLE}\ns_lshl_b32 s{S_WQB}, s{S_WQB}, 8\ns_lshl_b32 s{S_T0}, s{S_W4}, 17\ns_add_u32 s{S_WQB}, s{S_WQB}, s{S_T0}")
    A(f"s_lshl_b32 s{S_XB}, s{S_B}, 17\ns_lshl_b32 s{S_T0}, s{S_W4}, 15\ns_add_u32 s{S_XB}, s{S_XB}, s{S_T0}\ns_lshl_b32 s{S_T0}, s{S_ROLE}, 14\ns_add_u32 s{S_XB}, s{S_XB}, s{S_T0}")
    A(f"s_mul_i32 s{S_WM}, s{S_ROLE}, {VU[1]-KU[1]}\ns_add_u32 s{S_WM}, s{S_WM}, {KU[1]}\ns_add_u32 s{S_WM}, s{S_WM}, s{S_WOFF}")
    A(f"s_lshl_b32 s{S_XM}, s{S_ROLE}, 11\ns_add_u32 s{S_XM}, s{S_XM}, s{S_WOFF}")
    A(f"s_lshl_b32 s{S_T0}, s{S_B}, 5\ns_add_u32 s{S_T0}, s{S_T0}, s{S_H0}\ns_lshl_b32 s{S_KB0}, s{S_T0}, 18\ns_add_u32 s{S_KB0}, s{S_KB0}, s{S_WOFF}\ns_add_u32 s{S_KB1}, s{S_KB0}, 0x40000")
    A(f"s_lshl_b32 s{S_T0}, s{S_ROLE}, 11\ns_add_u32 s{S_KH}, s{S_KB0}, s{S_T0}")
    A("s_waitcnt lgkmcnt(0)")
    A(f"s_add_u32 s{S_T2}, s62, {EP_OFF}\ns_addc_u32 s{S_T3}, s63, 0\ns_load_dword s{S_NON}, s[{S_T2}:{S_T3}], 0")
    make_srd(A, SX, 48, 49, None, 2 * MB)
    make_srd(A, SWQ, 54, 55, None, 4 * MB)
    if OPT.get("trace"): A(f"v_writelane_b32 v{TRV}, s92, 63")
    vm = VM(A)
    def touch(lab):
        A(f"s_lshr_b32 s{S_T0}, s2, 3\ns_cmp_ge_u32 s{S_T0}, 16\ns_cbranch_scc1 L_tx{lab} ; KEEPVM")
        A(f"v_lshrrev_b32 v{T2}, 4, v{L}\nv_and_b32 v{T}, 15, v{L}\nv_lshlrev_b32 v{T}, 7, v{T}\nv_lshl_add_u32 v{T}, v{T2}, 13, v{T}")
        A(f"s_lshl_b32 s{S_T0}, s{S_T0}, 15\ns_lshl_b32 s{S_T1}, s{S_WAVE}, 19\ns_add_u32 s{S_T0}, s{S_T0}, s{S_T1}")
        A(f"s_lshl_b32 s{S_T1}, s{S_HG}, 11\ns_add_u32 s{S_T0}, s{S_T0}, s{S_T1}")
        A(f"buffer_load_dword v{T3}, v{T}, s[{SWQ}:{SWQ+3}], s{S_T0} offen{cf} ; NOTRACK\ns_branch L_td{lab} ; KEEPVM")
        A(f"L_tx{lab}: ; KEEPVM\nv_lshlrev_b32 v{T}, 10, v{L}\ns_sub_u32 s{S_T0}, s{S_T0}, 16\ns_lshl_b32 s{S_T0}, s{S_T0}, 16\ns_lshl_b32 s{S_T1}, s{S_WAVE}, 7\ns_add_u32 s{S_T0}, s{S_T0}, s{S_T1}")
        A(f"s_bfe_u32 s{S_T1}, s2, 0x10002\ns_lshl_b32 s{S_T1}, s{S_T1}, 20\ns_add_u32 s{S_T0}, s{S_T0}, s{S_T1}")
        A(f"buffer_load_dword v{T3}, v{T}, s[{SX}:{SX+3}], s{S_T0} offen{cf} ; NOTRACK\nL_td{lab}: ; KEEPVM")
    def touch_if(lo, hi, lab):
        if not OPT.get("touch", 1) or lo >= hi: return
        A(f"s_cmp_lt_u32 s{S_WAVE}, {lo}\ns_cbranch_scc1 L_ts{lab} ; KEEPVM\ns_cmp_ge_u32 s{S_WAVE}, {hi}\ns_cbranch_scc1 L_ts{lab} ; KEEPVM")
        touch(lab)
        A(f"L_ts{lab}: ; KEEPVM")
    def chunk_dmas(c):
        be = WOFFS[c % 3]
        r = []
        for j in range(4):
            r.append(f"s_add_u32 m0, s{S_WM}, {be + j*1024}\ns_add_u32 s{S_T1}, s{S_WQB}, {(64*c + 4*j)*8192}\nbuffer_load_dwordx4 v{WD + (j >> 1)}, s[{SWQ}:{SWQ+3}], s{S_T1} offen{cf} lds")
        for j in range(2):
            r.append(f"s_add_u32 m0, s{S_XM}, {XUN[c % 3] + j*1024}\ns_add_u32 s{S_T1}, s{S_XB}, {j*8192 + c*128}\nbuffer_load_dwordx4 v{XD + j}, s[{SX}:{SX+3}], s{S_T1} offen{cf} lds")
        return r
    def kv_half(item):
        kind, g = item[0], int(item[1])
        unit = (KU if kind == "K" else VU)[g % NR]
        srd = SK if kind == "K" else SV
        return [f"s_add_u32 s{S_T2}, s{S_KH}, {g*U}\ns_add_u32 m0, s{S_XM}, {unit}\nbuffer_load_dwordx4 v{(KH if kind == 'K' else VD) + p}, s[{srd}:{srd+3}], s{S_T2} offen offset:{p*1024} nt lds" for p in range(2)]
    t1, t2 = OPT.get("t1", 2), OPT.get("t2", 4)
    touch_if(0, t1, "a")
    for x in chunk_dmas(0): A(x)
    vm.issued("C0", 6)
    touch_if(t1, t2, "b")
    make_srd(A, SK, 50, 51, None, 128 * MB)
    make_srd(A, SV, 52, 53, None, 128 * MB)
    for x in chunk_dmas(1): A(x)
    vm.issued("C1", 6)
    touch_if(t2, 8, "c")
    A(f"v_lshrrev_b32 v{T}, 4, v{L}\nv_and_b32 v{T2}, 15, v{L}")
    for j in range(4):
        A(f"v_add_u32 v{T4}, {4*j}, v{T}\nv_xor_b32 v{T4}, v{T4}, v{T2}\nv_lshlrev_b32 v{T4}, 4, v{T4}\nv_lshl_add_u32 v{KD+j}, v{T}, 8, v{T4}")
    A(f"s_cmp_eq_u32 s{S_ROLE}, 0\ns_cselect_b64 vcc, -1, 0")
    A(f"v_cndmask_b32 v{KH}, v{KD+2}, v{KD}, vcc\nv_cndmask_b32 v{KH+1}, v{KD+3}, v{KD+1}, vcc")
    make_srd(A, SWS, 62, 63, None, 40 * MB)
    make_srd(A, SOUT, 58, 59, None, 2 * MB)
    make_srd(A, SWO, 56, 57, None, 4 * MB)
    A(f"s_mov_b32 s{S_C}, {hex(f2u(C_SCALE))}\ns_mov_b32 s{S_MU}, {hex(-(NR-1)*U & 0xffffffff)}\ns_mov_b32 s{S_ONE}, 0x3f803f80")
    A(f"v_xor_b32 v{T4}, v{T}, v{T2}\nv_lshlrev_b32 v{T4}, 4, v{T4}\nv_lshl_add_u32 v{T4}, v{T2}, 8, v{T4}")
    for s in range(4): A(f"v_xor_b32 v{KA+s}, {64*s}, v{T4}")
    A(f"v_lshrrev_b32 v{T4}, 1, v{T2}\nv_xor_b32 v{T4}, v{T4}, v{T}\nv_lshlrev_b32 v{T4}, 4, v{T4}\nv_lshl_add_u32 v{T4}, v{T2}, 7, v{T4}")
    A(f"v_add_u32 v{T4}, s{S_WOFF}, v{T4}\nv_add_u32 v{XA0}, {KU[4]}, v{T4}\nv_xor_b32 v{XA0+1}, 64, v{XA0}")
    for s in range(2): A(f"v_add_u32 v{XA1+s}, {VU[4]-KU[4]}, v{XA0+s}")
    A(f"v_bfe_u32 v{T2}, v{L}, 2, 3\nv_and_b32 v{T4}, 3, v{L}\nv_lshlrev_b32 v{T4}, 3, v{T4}\nv_lshl_add_u32 v{T4}, v{T2}, 5, v{T4}")
    A(f"v_bfe_u32 v{T2}, v{L}, 2, 2\nv_lshl_add_u32 v{T4}, v{T2}, 8, v{T4}")
    A(f"v_lshl_add_u32 v{TRB}, v{T}, 10, v{T4}")
    A(f"v_lshl_add_u32 v{T4}, v{T}, 11, v{T4}\ns_sub_u32 s{S_T0}, s{S_WM}, s{S_WOFF}\nv_add_u32 v{T4}, s{S_T0}, v{T4}")
    A(f"v_add_u32 v{T2}, {VU[0]}, v{TRB}")
    for db in range(8): A(f"v_xor_b32 v{WA+db}, {32*db}, v{T4}\nv_xor_b32 v{VA+db}, {32*db}, v{T2}")
    A(f"v_lshlrev_b32 v{OST}, 4, v{L}")
    A(f"s_mov_b32 s{S_KIDX}, 0\ns_mov_b32 s{S_VIDX}, 0\ns_mov_b32 s{S_ITEM}, 0")
    A(f"s_waitcnt lgkmcnt(0)\ns_add_u32 s{S_NON}, s{S_NON}, 1")
    kvsched = {int(k): v for k, v in (x.split(":") for x in OPT["kv"].split(","))}
    XF = S0
    for r in range(64): A(f"v_mov_b32 v{O+r}, 0")
    def reads(i):
        c, s = i // 4, i % 4
        ks, dh = s // 2, s % 2
        XA, xo = (XA1, 0) if c % 3 == 1 else (XA0, XUN[c % 3] - KU[4])
        rd = []
        if dh == 0: rd += [f"ds_read_b128 {r4(XF+(ks*2+u)*4)}, v{XA+ks} offset:{xo + u*2048}" for u in range(2)]
        for b in range(4):
            d = FA + (s * 4 + b) * 4
            for x in range(2):
                rd.append(f"ds_read_b64_tr_b16 {r2(d+2*x)}, v{WA+dh*4+b} offset:{WOFFS[c % 3] + ks*8192 + x*1024}")
        return rd
    def mfs(i):
        s = i % 4
        ks, dh = s // 2, s % 2
        return [f"{MF} {r4(O+((dh*4+b)*2+u)*4)}, {r4(FA+(s*4+b)*4)}, {r4(XF+(ks*2+u)*4)}, {r4(O+((dh*4+b)*2+u)*4)}" for b in range(4) for u in range(2)]
    vm.wait("C0")
    A("s_barrier")
    tr(A, 40, 2)
    for r in reads(0) + reads(1): A(r)
    pend = chunk_dmas(2); vm.issued("C2", 6)
    for i in range(32):
        c, s = i // 4, i % 4
        m = mfs(i)
        if not (s == 3 and c < 7): A(f"s_waitcnt lgkmcnt({len(reads(i+1)) if i < 31 else 0})")
        if s == 2 and c < 7:
            A(m[0]); A(m[1]); m = m[2:]
            vm.wait(f"C{c+1}")
            A("s_waitcnt lgkmcnt(0)\ns_barrier")
            tr(A, 41 + c, 2)
            if c == OPT.get("prio", 6): A(f"s_cmp_ge_u32 s{S_WAVE}, 4\ns_cbranch_scc1 L_np\ns_setprio 2\nL_np: ; KEEPLG KEEPVM")
            if c + 3 < 8: pend += chunk_dmas(c + 3); vm.issued(f"C{c+3}", 6)
            for item in (kvsched[c + 1].split("+") if (c + 1) in kvsched else []):
                pend += kv_half(item); vm.issued(item, 2)
        fill = reads(i + 2) if i + 2 < 32 else []
        take = pend[:OPT.get("dper", 3)] if s != 1 else pend
        pend = pend[len(take):]
        k = len(m)
        per = [[] for _ in range(k)]
        for n_, x in enumerate(take): per[(2 * n_) % k].append(x)
        for n_, x in enumerate(fill): per[n_ * k // max(len(fill), 1)].append(x)
        for mm, fl in zip(m, per):
            A(mm)
            for x in fl: A(x)
    assert not pend
    A(f"s_cmp_ge_u32 s{S_WAVE}, 4\ns_cbranch_scc1 L_H")
    return vm

def swaps(A, x, y):
    for i in range(2): A(f"v_permlane32_swap_b32 v{x+i}, v{y+i}")
    for i in range(2): A(f"v_permlane16_swap_b32 v{x+i}, v{y+i}")
def q_convert(A):
    for s in range(4):
        for u in range(2):
            q = Q + (s * 2 + u) * 4
            for t in range(2):
                a = O + ((2 * s + t) * 2 + u) * 4
                for r in range(4): A(f"v_mul_f32 v{a+r}, s{S_C}, v{a+r}")
                A(f"v_cvt_pk_bf16_f32 v{q+2*t}, v{a}, v{a+1}\nv_cvt_pk_bf16_f32 v{q+2*t+1}, v{a+2}, v{a+3}")
        if s:
            for u in range(2): swaps(A, Q + ((s-1) * 2 + u) * 4, Q + ((s-1) * 2 + u) * 4 + 2)
    for u in range(2): swaps(A, Q + (6 + u) * 4, Q + (6 + u) * 4 + 2)

def slot_addr(A, dst, ua, ub):
    A(f"s_xor_b32 s{S_T1}, s{S_W4}, s{S_HG}\ns_and_b32 s{S_T0}, s{S_T1}, 1\ns_lshl_b32 s{S_T0}, s{S_T0}, 13\ns_lshr_b32 s{S_T1}, s{S_T1}, 1\ns_mul_i32 s{S_T1}, s{S_T1}, {(ub-ua) & 0xffffffff}")
    A(f"s_add_u32 s{S_T0}, s{S_T0}, s{S_T1}\ns_add_u32 s{S_T0}, s{S_T0}, {ua}\nv_add_u32 v{dst}, s{S_T0}, v{OST}")
def xw_value(A, s):
    A(f"s_getreg_b32 s{S_T0}, hwreg(HW_REG_XCC_ID, 0, 4)\ns_lshl_b32 s{s}, s{S_NON}, 4\ns_or_b32 s{s}, s{s}, s{S_T0}")
def mode_load(A, dst, PA):
    A(f"s_mov_b64 exec, 0x111\nbuffer_load_dword v{dst}, v{PA}, s[{SWS}:{SWS+3}], 0 offen offset:32 sc1 ; NOTRACK\ns_mov_b64 exec, -1")
def mode_eval(A, src):
    xw_value(A, S_T1)
    A(f"s_mov_b64 exec, 0x111\nv_cmp_ne_u32 vcc, s{S_T1}, v{src}\ns_mov_b64 exec, -1\ns_cmp_eq_u64 vcc, 0\ns_cselect_b32 s{S_FAST}, 1, 0")
    if OPT.get("slow"): A(f"s_mov_b32 s{S_FAST}, 0")
def pub_stores(A, F, item, lab, pre=None):
    A(f"s_lshl_b32 s{S_T0}, s{S_B}, 5\ns_add_u32 s{S_T0}, s{S_T0}, s{S_H0}\ns_add_u32 s{S_T0}, s{S_T0}, {item}\ns_lshl_b32 s{S_T0}, s{S_T0}, 2\ns_add_u32 s{S_T0}, s{S_T0}, s{S_W4}\ns_lshl_b32 s{S_T0}, s{S_T0}, 13\ns_add_u32 s{S_T1}, s{S_T0}, 4096")
    A(f"s_cmp_eq_u32 s{S_FAST}, 0\ns_cbranch_scc1 {lab}_s")
    for fl, end in (("", f"s_branch {lab}_e"), (" sc1", "")):
        if fl: A(f"{lab}_s:")
        for s in range(8):
            r = F[s] if isinstance(F, list) else F + 4 * s
            for x in (pre or {}).get(s, []): A(x)
            A(f"buffer_store_dwordx4 {r4(r)}, v{OST}, s[{SWS}:{SWS+3}], s{S_T0 if s < 4 else S_T1} offen offset:{(s%4)*1024}{fl}")
        if end: A(end)
    A(f"{lab}_e:")
def pub_flag(A, item, lab, tmp):
    A(f"s_lshl_b32 s{S_T2}, s2, 7\ns_lshl_b32 s{S_T3}, s{S_W4}, 2\ns_add_u32 s{S_T2}, s{S_T2}, s{S_T3}\ns_add_u32 s{S_T2}, s{S_T2}, {FO_OFF + item * 16}")
    A(f"v_mov_b32 v{tmp}, s{S_NON}\nv_mov_b32 v{tmp+1}, 0\ns_mov_b64 exec, 1")
    A(f"s_cmp_eq_u32 s{S_FAST}, 0\ns_cbranch_scc1 {lab}_s")
    A(f"buffer_store_dword v{tmp}, v{tmp+1}, s[{SWS}:{SWS+3}], s{S_T2} offen\ns_branch {lab}_e")
    A(f"{lab}_s:\nbuffer_store_dword v{tmp}, v{tmp+1}, s[{SWS}:{SWS+3}], s{S_T2} offen sc1\n{lab}_e:\ns_mov_b64 exec, -1")
def peer_setup(A, PA):
    A(f"s_bfe_u32 s{S_T2}, s2, 0x20003\ns_xor_b32 s{S_T3}, s{S_W4}, s{S_HG}")
    for d in range(1, 4):
        A(f"s_add_u32 s{S_T0}, s{S_T2}, {d}\ns_and_b32 s{S_T0}, s{S_T0}, 3\ns_lshl_b32 s{S_T0}, s{S_T0}, 1\ns_lshl_b32 s{S_T1}, s{S_HG}, 3\ns_add_u32 s{S_T0}, s{S_T0}, s{S_T1}")
        A(f"s_lshl_b32 s{S_T1}, s{S_B}, 5\ns_add_u32 s{S_T1}, s{S_T1}, s{S_T0}\ns_lshl_b32 s{S_T1}, s{S_T1}, 2\ns_add_u32 s{S_T1}, s{S_T1}, s{S_T3}\ns_lshl_b32 s{83+d}, s{S_T1}, 13")
    A(f"v_lshrrev_b32 v{T}, 2, v{L}\nv_add_u32 v{T}, s{S_T2}, v{T}\nv_add_u32 v{T}, 1, v{T}\nv_and_b32 v{T}, 3, v{T}\nv_lshlrev_b32 v{T}, 10, v{T}")
    A(f"s_and_b32 s{S_T0}, s2, 0xe7\ns_lshl_b32 s{S_T0}, s{S_T0}, 7\ns_add_u32 s{S_T0}, s{S_T0}, {FO_OFF}\nv_and_b32 v{PA}, 3, v{L}\nv_lshl_add_u32 v{PA}, v{PA}, 2, v{T}\nv_add_u32 v{PA}, s{S_T0}, v{PA}")
def poll_loop(A, lab, mask, off, PV_, PA):
    A(f"{lab}:\ns_mov_b64 exec, {hex(mask)}")
    A(f"buffer_load_dword v{PV_}, v{PA}, s[{SWS}:{SWS+3}], 0 offen offset:{off} sc1\ns_waitcnt vmcnt(0)")
    A(f"v_cmp_ne_u32 vcc, s{S_NON}, v{PV_}\ns_mov_b64 exec, -1\ns_cbranch_vccnz {lab}")
def dma_peer(A, d, o, ua, ub):
    A(f"s_and_b32 s{S_T0}, s{S_W4}, 1\ns_lshl_b32 s{S_T0}, s{S_T0}, 13\ns_lshr_b32 s{S_T1}, s{S_W4}, 1\ns_mul_i32 s{S_T1}, s{S_T1}, {(ub-ua) & 0xffffffff}\ns_add_u32 s{S_T0}, s{S_T0}, s{S_T1}")
    A(f"s_add_u32 m0, s{S_T0}, {ua}\ns_add_u32 s{S_T1}, s{83+d}, {o*32768}")
    for j in range(8):
        if j == 4: A(f"s_add_u32 m0, m0, 4096\ns_add_u32 s{S_T1}, s{S_T1}, 4096")
        A(f"buffer_load_dwordx4 v{OST}, s[{SWS}:{SWS+3}], s{S_T1} offen offset:{(j%4)*1024} sc1 lds")

def gen_A(A, vm0):
    vma = VM(A); vma.out = list(vm0.out)
    PVA, PAA, MDA = 26, 28, 27
    q_convert(A)
    vma.wait("K0")
    A("s_waitcnt lgkmcnt(0)\ns_barrier")
    def kread(F, half): return [f"ds_read_b128 {r4(F+(s*2+j)*4)}, v{KA+s} offset:{half*8192 + j*4096}" for s in range(4) for j in range(2)]
    def vread(F, half): return [f"ds_read_b64_tr_b16 {r2(F+db*4+2*x)}, v{VA+db} offset:{half*8192 + x*4096}" for db in range(8) for x in range(2)]
    def qk(F, S, first):
        r = []
        for s in range(4):
            for j in range(2):
                for u in range(2):
                    d = S + (j * 2 + u) * 4
                    c = r4(d) if s else ("0" if first else r4(NM + 4 * u))
                    r.append(f"{MF} {r4(d)}, {r4(F+(s*2+j)*4)}, {r4(Q+(s*2+u)*4)}, {c}")
        return r
    def pv(F, P): return [f"{MF} {r4(O+(db*2+u)*4)}, {r4(F+db*4)}, {r4(P+4*u)}, {r4(O+(db*2+u)*4)}" for db in range(8) for u in range(2)]
    E = [T, T2, T3, T4]
    CMP = [f"v_add_f32 v{T}, v{LH}, v{LH+1}", f"v_cmp_nge_f32 vcc, 1.0, v{T}"]
    if OPT.get("norare"): CMP = [f"v_cmp_lt_f32 vcc, v{L}, v{L}"]
    MRG = [f"v_add_f32 v{L0+u}, v{L0+u}, v{LH+u}" for u in range(2)]
    def sexp(S, P, part):
        def src(n): return S + (part * 2 + (n >> 1)) * 4 + 2 * (n & 1)
        def dst(n): return P + 4 * (n >> 1) + 2 * part + (n & 1)
        def fin(n): return [f"v_cvt_pk_bf16_f32 v{dst(n)}, v{E[(2*n)%4]}, v{E[(2*n+1)%4]}"]
        def dt(n):
            u = n >> 1
            return [f"v_dot2_f32_bf16 v{LH+u}, v{dst(n)}, s{S_ONE}, " + ("0" if (part == 0 and n % 2 == 0) else f"v{LH+u}")]
        r = []
        for n in range(4):
            r += [f"v_exp_f32 v{E[(2*n)%4]}, v{src(n)}", f"v_exp_f32 v{E[(2*n+1)%4]}, v{src(n)+1}"]
            if n > 0: r += fin(n - 1)
            if n > 1: r += dt(n - 2)
        return r + fin(3) + dt(2) + dt(3)
    def adv(idx, regs, n):
        return ([f"s_cmp_eq_u32 s{idx}, {(NR-1)*U}\ns_cselect_b32 s{S_D}, s{S_MU}, {U}\ns_add_u32 s{idx}, s{idx}, s{S_D}"] +
                [f"v_add_u32 v{regs+i}, s{S_D}, v{regs+i}" for i in range(n)])
    def allred(r, tmp, op):
        for sw in ("32", "16"):
            A(f"v_mov_b32 v{tmp}, v{r}\nv_permlane{sw}_swap_b32 v{r}, v{tmp}\n{op} v{r}, v{r}, v{tmp}")
    def xmax(S):
        for u, t in ((0, T), (1, T2)):
            a, b = S + 4 * u, S + 8 + 4 * u
            A(f"v_max3_f32 v{t}, v{a}, v{a+1}, v{a+2}\nv_max3_f32 v{t}, v{t}, v{a+3}, v{b}\nv_max3_f32 v{t}, v{t}, v{b+1}, v{b+2}\nv_max_f32 v{t}, v{t}, v{b+3}")
            allred(t, T3, "v_max_f32")
            A(f"v_ceil_f32 v{t}, v{t}\nv_add_f32 v{t}, {hex(f2u(DBIAS))}, v{t}")
    def ssub(S): return [f"v_sub_f32 v{S+i}, v{S+i}, v{T if (i >> 2) % 2 == 0 else T2}" for i in range(16)]
    def rare(S, P, SO):
        xmax(S)
        for t, k in ((T, T3), (T2, T4)):
            A(f"v_max_f32 v{t}, 0, v{t}\nv_cvt_i32_f32 v{k}, v{t}\nv_sub_u32 v{k}, 0, v{k}")
        for i in range(8): A(f"v_sub_f32 v{NM+i}, v{NM+i}, v{T if i < 4 else T2}")
        for x in ssub(S) + ssub(SO): A(x)
        A(f"v_ldexp_f32 v{L0}, v{L0}, v{T3}\nv_ldexp_f32 v{L0+1}, v{L0+1}, v{T4}")
        for i in range(64): A(f"v_ldexp_f32 v{O+i}, v{O+i}, v{T3 if (i >> 2) % 2 == 0 else T4}")
        for x in sexp(S, P, 0) + sexp(S, P, 1): A(x)
    A("LA_item:")
    for r in kread(FA, 0) + kread(FB, 1): A(r)
    zo = [f"v_mov_b32 v{O+r}, 0" for r in range(64)] + [f"v_mov_b32 v{L0}, 0", f"v_mov_b32 v{L0+1}, 0"]
    for z in zo[:30]: A(z)
    interleave(A, qk(FA, S0, True), zo[30:])
    for r in adv(S_KIDX, KA, 4): A(r)
    xmax(S0)
    for i in range(8): A(f"v_sub_f32 v{NM+i}, 0, v{T if i < 4 else T2}")
    for x in ssub(S0): A(x)
    interleave(A, qk(FB, S1, False), sexp(S0, P0, 0) + sexp(S0, P0, 1))
    A("s_waitcnt vmcnt(0) lgkmcnt(0)\ns_barrier")
    for r in kread(FA, 0): A(r)
    A(f"s_or_b32 s{S_T0}, s{S_W4}, s{S_ITEM}\ns_cmp_lg_u32 s{S_T0}, 0\ns_cbranch_scc1 LA_nocnt ; KEEPLG")
    xw_value(A, S_T1)
    A(f"v_mov_b32 v26, s{S_T1}\nv_mov_b32 v27, 0\ns_lshl_b32 s{S_T0}, s2, 7\ns_add_u32 s{S_T0}, s{S_T0}, {FO_OFF}\ns_mov_b64 exec, 1")
    A(f"buffer_store_dword v26, v27, s[{SWS}:{SWS+3}], s{S_T0} offen offset:32 sc1\ns_mov_b64 exec, -1")
    A("LA_nocnt: ; KEEPLG")
    A(f"s_mov_b32 s{S_IT}, 0")
    A("LA_loop: ; KEEPLG")
    W0 = ["s_waitcnt lgkmcnt(0)"]
    if OPT.get("nocomp"):
        A(f"s_waitcnt lgkmcnt(0)\ns_barrier\ns_add_u32 s{S_IT}, s{S_IT}, 1\ns_branch LA_back0")
    ak = adv(S_KIDX, KA, 4); av = adv(S_VIDX, VA, 8)
    sched(A, qk(FA, S0, False), vread(FB, 0), MRG + sexp(S1, P1, 0), rgap=2, pre=W0)
    sched(A, pv(FB, P0), kread(FA, 1), sexp(S1, P1, 1) + ak + CMP, pre=W0)
    A("s_cbranch_vccnz LA_rare1 ; KEEPLG")
    A("LA_back1: ; KEEPLG")
    sched(A, qk(FA, S1, False), vread(FB, 1), MRG + sexp(S0, P0, 0), rgap=2, pre=W0)
    p1 = pv(FB, P1)
    e4 = sexp(S0, P0, 1)
    A("s_waitcnt lgkmcnt(0)")
    interleave(A, p1[:4], e4[:3] + av[:3])
    A("s_barrier")
    sched(A, p1[4:], kread(FA, 0), e4[3:] + av[3:] + [f"s_add_u32 s{S_IT}, s{S_IT}, 1"] + CMP)
    A("s_cbranch_vccnz LA_rare0 ; KEEPLG")
    A("LA_back0: ; KEEPLG")
    A(f"s_cmp_lt_u32 s{S_IT}, 15\ns_cbranch_scc1 LA_loop ; KEEPLG")
    A("s_waitcnt lgkmcnt(0)")
    for r in vread(FB, 0): A(r)
    e = MRG + sexp(S1, P1, 0) + sexp(S1, P1, 1)
    for x in e[:7]: A(x)
    sched(A, pv(FB, P0), vread(FA, 1), e[7:] + CMP, rgap=2)
    A("s_cbranch_vccnz LA_rare2 ; KEEPLG")
    A("LA_back2: ; KEEPLG")
    for x in MRG: A(x)
    for m in pv(FA, P1)[:8]: A(m)
    for u in range(2):
        allred(L0 + u, T, "v_add_f32")
        A(f"v_rcp_f32 v{L0+u}, v{L0+u}")
    interleave(A, pv(FA, P1)[8:], av)
    for e_ in range(4):
        for u in range(2):
            for t in range(2):
                a = O + ((2 * e_ + t) * 2 + u) * 4
                for r in range(4): A(f"v_mul_f32 v{a+r}, v{a+r}, v{L0+u}")
                d = FB + (e_ * 2 + u) * 4 + 2 * t
                A(f"v_cvt_pk_bf16_f32 v{d}, v{a}, v{a+1}\nv_cvt_pk_bf16_f32 v{d+1}, v{a+2}, v{a+3}")
    A(f"s_cmp_lg_u32 s{S_ITEM}, 0\ns_cbranch_scc1 LA_done")
    A(f"s_mov_b32 s{S_ITEM}, 1")
    slot_addr(A, T, *UA)
    for s in range(8): A(f"ds_read_b128 {r4(Q+4*s)}, v{T} offset:{s*1024}")
    A("s_waitcnt lgkmcnt(0)")
    for s in range(8): A(f"ds_write_b128 v{T}, {r4(FB+4*s)} offset:{s*1024}")
    peer_setup(A, PAA)
    mode_load(A, MDA, PAA)
    A("s_waitcnt lgkmcnt(0)\ns_branch LA_item")
    A("LA_done:")
    slot_addr(A, T, *O1U)
    for s in range(8): A(f"ds_write_b128 v{T}, {r4(FB+4*s)} offset:{s*1024}")
    mode_eval(A, MDA)
    pub_stores(A, FB, 1, "LA_pub")
    A("s_waitcnt lgkmcnt(0)\ns_barrier")
    A("s_waitcnt vmcnt(0)")
    pub_flag(A, 1, "LA_fl", T)
    A("s_barrier")
    dma_peer(A, 2, 0, *UA); dma_peer(A, 3, 0, *UC)
    A("s_waitcnt vmcnt(0)\ns_barrier")
    poll_loop(A, "LA_q1", 0x0ff, 16, PVA, PAA)
    dma_peer(A, 1, 1, *O1U); dma_peer(A, 2, 1, *UD)
    poll_loop(A, "LA_q3", 0xf00, 16, PVA, PAA)
    A("s_barrier")
    dma_peer(A, 3, 1, *UA)
    A("s_waitcnt vmcnt(0)\ns_barrier")
    A("s_endpgm")
    A("LA_rare0:\ns_waitcnt lgkmcnt(0)")
    rare(S0, P0, S1)
    A("s_branch LA_back0")
    A(f"LA_rare1:\ns_waitcnt lgkmcnt(0)\ns_mov_b32 s{S_RET}, 0")
    A("LA_rare1b:")
    rare(S1, P1, S0)
    A(f"s_cmp_eq_u32 s{S_RET}, 0\ns_cbranch_scc1 LA_back1\ns_branch LA_back2")
    A(f"LA_rare2:\ns_waitcnt lgkmcnt(0)\ns_mov_b32 s{S_RET}, 1\ns_branch LA_rare1b")

def gen_H(A, vm):
    HKD, HVD, HWOD = 2, 6, 8
    OB3 = 10
    WT = 13
    WTR = [[13, 14, 15], [16, 17, 18]]
    PV_, PA, HT, HT2, MD = 19, 21, 22, 0, 22
    ACC, BP, OBUF = 24, 88, 232
    HKV = [(x[0], int(x[1])) for x in OPT.get("hkv", "").split("+") if x]
    A("L_H:")
    def seg(off): return 0 if off < 65536 - 8192 else (1 if off < 49152 + 65536 - 8192 else 2)
    regs = {"KD": KD, "VD": VD}
    def dma_kv(kind, g):
        if g >= 32: return
        base = S_KB0 if g < 16 else S_KB1
        unit = (KU if kind == "K" else VU)[g % NR]
        srd = SK if kind == "K" else SV
        A(f"s_add_u32 s{S_T0}, s{base}, {(g % 16) * U}\ns_add_u32 m0, s{S_WOFF}, {unit}")
        for j in range(4):
            A(f"buffer_load_dwordx4 v{regs['KD']+j if kind == 'K' else regs['VD']+(j&1)}, s[{srd}:{srd+3}], s{S_T0} offen offset:{j*1024} nt lds")
        vm.issued(f"{kind}{g}", 4)
    def dma_blk(i, unit):
        slot = i // 2
        d, o = slot % 4, slot // 4
        koff = (o * 128 + (i % 2) * 64) * 1024
        for j in range(4):
            A(f"s_add_u32 m0, s{S_WOFF}, {unit + j*1024}\ns_add_u32 s{S_T1}, s{S_HK+d}, {koff + j*4096}")
            A(f"buffer_load_dwordx4 v{HWOD+(j&1)}, s[{SWO}:{SWO+3}], s{S_T1} offen nt lds")
        vm.issued(f"W{i}", 4)
    breg = {}
    def tr_blk(i, unit, pos):
        breg[i] = BP + pos * 16
        r = []
        for e_ in range(2):
            for t in range(2):
                for x in range(2):
                    off = unit + e_ * 8192 + x * 4096
                    sg = seg(off)
                    r.append(f"ds_read_b64_tr_b16 {r2(breg[i]+(e_*2+t)*4+2*x)}, v{WTR[t][sg]} offset:{off - sg*49152}")
        return r
    def compute(slot, ua, ub, extra=(), half=None):
        def rd(n):
            e_, qs = n // 8, n % 8
            qi, u = qs // 2, qs % 2
            off = (ua if qi < 2 else ub) + (qi % 2) * 8192 + (e_ * 2 + u) * 1024
            sg = seg(off)
            return f"ds_read_b128 {r4(OBUF+(n%6)*4)}, v{OB3+sg} offset:{off - sg*49152}"
        lo, hi = (0, 32) if half is None else (16 * half, 16 * half + 16)
        for n in range(lo, lo + 5): A(rd(n))
        for n in range(lo, hi):
            e_, qs = n // 8, n % 8
            for t in range(2):
                bf = breg[2 * slot + e_ // 2] + ((e_ % 2) * 2 + t) * 4
                a = ACC + (qs // 2) * 16 + (qs % 2) * 8 + t * 4
                A(f"{MF} {r4(a)}, {r4(bf)}, {r4(OBUF+(n%6)*4)}, " + ("0" if (slot == 0 and e_ == 0) else r4(a)))
            if n + 5 < hi: A(rd(n + 5))
        for x in extra: A(x)
    for k_, g_ in HKV: dma_kv(k_, g_)
    vm.wait("K0")
    A("s_waitcnt lgkmcnt(0)\ns_barrier")
    tr(A, 51, 2)
    ev = {g: [] for g in range(32)}
    SU = [KU[3], VU[3]]
    for i in range(9):
        gi = 1 + (i // 2) * 3 + (i % 2)
        ev[gi].append(("dma", i, SU[i % 2])); ev[gi + 2].append(("tr", i, SU[i % 2], i))
    go = OPT.get("go", 24)
    ev[go - 2].append(("dma", 9, SU[1])); ev[go - 1].append(("dma", 10, SU[0]))
    ev[go].append(("own0", 0)); ev[go + 1].append(("own0", 1))
    ev[go + 1].append(("tr", 9, SU[1], 0)); ev[go + 2].append(("tr", 10, SU[0], 1))
    ev[go + 3].append(("dma", 12, SU[1])); ev[go + 4].append(("dma", 11, SU[0]))
    RAW = {11: SU[0], 12: SU[1], 13: KU[29 % NR], 14: KU[30 % NR], 15: VU[29 % NR]}
    ev[29].append(("dma", 13, RAW[13])); ev[30] += [("dma", 14, RAW[14]), ("dma", 15, RAW[15])]
    gp = OPT.get("gp", 27)
    ev[gp - 3].append(("mode",))
    ev[gp].append(("pub",)); ev[gp + 2].append(("flag",))
    ev[29].append(("prepoll",)); ev[30].append(("try1",))
    for g in range(32):
        need = [f"W{e[1]}" for e in ev[g] if e[0] == "tr"] + ["ST" for e in ev[g] if e[0] == "flag"] + ["M" for e in ev[g] if e[0] == "pub"] + ["PL" for e in ev[g] if e[0] == "try1"]
        vm.wait(f"K{g+1}", f"V{g}", *need)
        A("s_waitcnt lgkmcnt(0)\ns_barrier")
        tr(A, g)
        if OPT.get("trace") == 1 and g < 31: A(f"s_memtime s[94:95]\ns_waitcnt lgkmcnt(0)\nv_writelane_b32 v{TRV}, s94, {32+g}")
        for e in ev[g]:
            if e[0] == "dma" and g < 29 and not OPT.get("nobg"): dma_blk(e[1], e[2])
            if e[0] == "mode": mode_load(A, MD, PA); vm.issued("M")
            if e[0] == "pub":
                mode_eval(A, MD)
                slot_addr(A, HT, *UA)
                fr = [OBUF + 4 * (s % 6) for s in range(8)]
                rdo = lambda s: f"ds_read_b128 {r4(fr[s])}, v{HT} offset:{s*1024}"
                pub_stores(A, fr, 0, "LH_pub", pre={0: [rdo(s) for s in range(6)], 6: [rdo(6), rdo(7)]})
                vm.issued("ST", 8)
            if e[0] == "flag": pub_flag(A, 0, "LH_fl", OBUF); vm.issued("F")
            if e[0] == "prepoll":
                A(f"s_mov_b64 exec, 0xfff\nbuffer_load_dword v{PV_}, v{PA}, s[{SWS}:{SWS+3}], 0 offen sc1 ; NOTRACK\ns_mov_b64 exec, -1"); vm.issued("PL")
            if e[0] == "try1":
                A(f"s_mov_b64 exec, 0xfff\nv_cmp_ne_u32 vcc, s{S_NON}, v{PV_}\ns_mov_b64 exec, -1\ns_mov_b32 s{S_RET}, 0\ns_cbranch_vccnz LH_nr")
                A(f"s_mov_b32 s{S_RET}, 1\nLH_nr:")
        dma_kv("K", g + NR)
        if g + NR - 1 > 2: dma_kv("V", g + NR - 1)
        for e in ev[g]:
            if e[0] == "dma" and g >= 29: dma_blk(e[1], e[2])
        if g == 30:
            A(f"s_cmp_eq_u32 s{S_RET}, 0\ns_cbranch_scc1 LH_n1")
            dma_peer(A, 1, 0, *UA)
            A("LH_n1:")
        if g == 0:
            q_convert(A)
            slot_addr(A, T, *UA)
            for s in range(8): A(f"ds_write_b128 v{T}, {r4(Q+4*s)} offset:{s*1024}")
            peer_setup(A, PA)
            for j in range(4): A(f"v_mov_b32 v{HKD+j}, v{KD+j}")
            for j in range(2): A(f"v_mov_b32 v{HVD+j}, v{VD+j}\nv_mov_b32 v{HWOD+j}, v{WOD+j}")
            regs.update(KD=HKD, VD=HVD)
            A(f"s_lshl_b32 s{S_T0}, s{S_W4}, 6\nv_xor_b32 v{WTR[0][0]}, s{S_T0}, v{TRB}\nv_xor_b32 v{WTR[1][0]}, 32, v{WTR[0][0]}\nv_mov_b32 v{OB3}, v{OST}")
            for i in (1, 2): A(f"v_add_u32 v{WTR[0][i]}, {i*49152}, v{WTR[0][0]}\nv_add_u32 v{WTR[1][i]}, {i*49152}, v{WTR[1][0]}\nv_add_u32 v{OB3+i}, {i*49152}, v{OST}")
            A(f"s_bfe_u32 s{S_T2}, s2, 0x20003")
            for d in range(4):
                A(f"s_add_u32 s{S_T0}, s{S_T2}, {d}\ns_and_b32 s{S_T0}, s{S_T0}, 3\ns_lshl_b32 s{S_T0}, s{S_T0}, 1\ns_lshl_b32 s{S_T1}, s{S_HG}, 3\ns_add_u32 s{S_T0}, s{S_T0}, s{S_T1}")
                A(f"s_lshl_b32 s{S_T0}, s{S_T0}, 17\ns_lshl_b32 s{S_T1}, s{S_T2}, 8\ns_add_u32 s{S_T0}, s{S_T0}, s{S_T1}\ns_lshl_b32 s{S_T1}, s{S_W4}, 14\ns_add_u32 s{S_HK+d}, s{S_T0}, s{S_T1}")
        for e in ev[g]:
            if e[0] == "own0": compute(0, *UA, half=e[1])
            if e[0] == "tr":
                for x in tr_blk(e[1], e[2], e[3]): A(x)
    A(f"s_cmp_lg_u32 s{S_RET}, 0\ns_cbranch_scc1 LH_p0d")
    poll_loop(A, "LH_p0", 0xfff, 0, PV_, PA)
    dma_peer(A, 1, 0, *UA)
    A("LH_p0d:\ns_waitcnt vmcnt(0) lgkmcnt(0)")
    tr(A, 52, 2)
    A("s_barrier")
    tr(A, 53, 2)
    def bar(i):
        A(f"s_waitcnt lgkmcnt(0)")
        tr(A, 30 + 2 * i, 2)
        A("s_barrier")
        tr(A, 31 + 2 * i, 2)
    compute(1, *UA, extra=tr_blk(11, RAW[11], 2) + tr_blk(12, RAW[12], 3))
    bar(1)
    compute(4, *O1U, extra=tr_blk(13, RAW[13], 8) + tr_blk(14, RAW[14], 0))
    bar(2)
    compute(2, *UA, extra=tr_blk(15, RAW[15], 4))
    compute(3, *UC)
    bar(3)
    compute(5, *O1U)
    compute(6, *UD)
    bar(4)
    compute(7, *UA)
    tr(A, 56, 2)
    X0, X1, X2 = 2, 3, 4
    A(f"s_bfe_u32 s{S_T2}, s2, 0x20003\ns_lshl_b32 s{S_T3}, s{S_B}, 2\ns_add_u32 s{S_T3}, s{S_T3}, s{S_T2}")
    for qi in range(1, 4):
        A(f"s_xor_b32 s{S_T0}, s{S_HG}, {qi}\ns_lshl_b32 s{S_T1}, s{S_T3}, 2\ns_add_u32 s{S_T0}, s{S_T0}, s{S_T1}\ns_lshl_b32 s{S_T0}, s{S_T0}, 2\ns_add_u32 s{S_T0}, s{S_T0}, s{S_HG}")
        A(f"s_lshl_b32 s{S_T0}, s{S_T0}, 2\ns_add_u32 s{S_T0}, s{S_T0}, s{S_W4}\ns_lshl_b32 s{S_T0}, s{S_T0}, 12\ns_add_u32 s{S_T0}, s{S_T0}, {PART_OFF}")
        for g in range(4):
            A(f"buffer_store_dwordx4 {r4(ACC+16*qi+4*g)}, v{OST}, s[{SWS}:{SWS+3}], s{S_T0} offen offset:{g*1024} sc1")
    A(f"v_add_u32 v{X0}, 1, v{L}\nv_xor_b32 v{X0}, s{S_HG}, v{X0}")
    A(f"s_lshl_b32 s{S_T0}, s{S_T3}, 9\ns_add_u32 s{S_T0}, s{S_T0}, {FP_OFF}\ns_lshl_b32 s{S_T1}, s{S_W4}, 2\ns_add_u32 s{S_T0}, s{S_T0}, s{S_T1}")
    A(f"s_lshl_b32 s{S_T1}, s{S_HG}, 4\ns_add_u32 s{S_T1}, s{S_T1}, s{S_T0}\nv_lshlrev_b32 v{X1}, 7, v{X0}\nv_add_u32 v{X1}, s{S_T1}, v{X1}")
    A(f"s_lshl_b32 s{S_T1}, s{S_HG}, 7\ns_add_u32 s{S_T1}, s{S_T1}, s{S_T0}\nv_lshlrev_b32 v{PA}, 4, v{X0}\nv_add_u32 v{PA}, s{S_T1}, v{PA}")
    A(f"v_mov_b32 v{X2}, s{S_NON}")
    A(f"s_waitcnt vmcnt(0)\ns_mov_b64 exec, 7\nbuffer_store_dword v{X2}, v{X1}, s[{SWS}:{SWS+3}], 0 offen sc1\ns_mov_b64 exec, -1")
    tr(A, 57, 2)
    poll_loop(A, "LH_p2", 7, 0, PV_, PA)
    tr(A, 58, 2)
    for qi in range(1, 4):
        A(f"s_xor_b32 s{S_T0}, s{S_HG}, {qi}\ns_lshl_b32 s{S_T1}, s{S_T3}, 2\ns_add_u32 s{S_T1}, s{S_T1}, s{S_HG}\ns_lshl_b32 s{S_T1}, s{S_T1}, 2\ns_add_u32 s{S_T0}, s{S_T0}, s{S_T1}")
        A(f"s_lshl_b32 s{S_T0}, s{S_T0}, 2\ns_add_u32 s{S_T0}, s{S_T0}, s{S_W4}\ns_lshl_b32 s{S_T0}, s{S_T0}, 12\ns_add_u32 s{S_T0}, s{S_T0}, {PART_OFF}")
        for g in range(4):
            A(f"buffer_load_dwordx4 {r4(BP+16*qi+4*g)}, v{OST}, s[{SWS}:{SWS+3}], s{S_T0} offen offset:{g*1024} sc1")
    A(f"v_and_b32 v{X0}, 15, v{L}\nv_lshlrev_b32 v{X0}, 10, v{X0}\nv_lshrrev_b32 v{X1}, 4, v{L}\nv_lshl_add_u32 v{X0}, v{X1}, 4, v{X0}")
    A(f"s_lshl_b32 s{S_T0}, s{S_B}, 17\ns_lshl_b32 s{S_T1}, s{S_HG}, 15\ns_add_u32 s{S_T0}, s{S_T0}, s{S_T1}\ns_lshl_b32 s{S_T1}, s{S_T2}, 8\ns_add_u32 s{S_T0}, s{S_T0}, s{S_T1}\ns_lshl_b32 s{S_T1}, s{S_W4}, 6\ns_add_u32 s{S_T0}, s{S_T0}, s{S_T1}\ns_add_u32 s{S_T1}, s{S_T0}, 16384")
    for qi in range(1, 4):
        for r in range(16): A(f"v_add_f32 v{ACC+r}, v{ACC+r}, v{BP+16*qi+r}")
    for j in range(8): A(f"v_cvt_pk_bf16_f32 v{OBUF+j}, v{ACC+2*j}, v{ACC+2*j+1}")
    for u in range(2): swaps(A, OBUF + 4 * u, OBUF + 4 * u + 2)
    A(f"buffer_store_dwordx4 {r4(OBUF)}, v{X0}, s[{SOUT}:{SOUT+3}], s{S_T0} offen")
    A(f"buffer_store_dwordx4 {r4(OBUF+4)}, v{X0}, s[{SOUT}:{SOUT+3}], s{S_T1} offen")
    if OPT.get("trace"): A("s_waitcnt vmcnt(0)")
    tr(A, 59, 2)
    A(f"s_or_b32 s{S_T0}, s2, s{S_W4}\ns_cmp_lg_u32 s{S_T0}, 0\ns_cbranch_scc1 LH_fin")
    A(f"v_lshlrev_b32 v{X0}, 7, v{L}\ns_and_b32 s{S_T2}, s{S_NON}, 0xfffffff\nLH_p3:")
    for i in range(4):
        A(f"s_mov_b32 s{S_T0}, {FO_OFF + i*8192}\nbuffer_load_dword v{OBUF+8+i}, v{X0}, s[{SWS}:{SWS+3}], s{S_T0} offen offset:32 sc1")
    A(f"s_mov_b64 s[{S_T0}:{S_T1}], 0")
    for i in range(4):
        A(f"v_lshrrev_b32 v{OBUF+8+i}, 4, v{OBUF+8+i}\nv_cmp_ne_u32 vcc, s{S_T2}, v{OBUF+8+i}\ns_or_b64 s[{S_T0}:{S_T1}], s[{S_T0}:{S_T1}], vcc")
    A(f"s_cmp_lg_u64 s[{S_T0}:{S_T1}], 0\ns_cbranch_scc1 LH_p3\nv_mov_b32 v{X0}, 0")
    A(f"v_mov_b32 v{X1}, s{S_NON}\ns_mov_b32 s{S_T0}, {EP_OFF}\ns_mov_b64 exec, 1\nbuffer_store_dword v{X1}, v{X0}, s[{SWS}:{SWS+3}], s{S_T0} offen sc1\ns_mov_b64 exec, -1")
    A("LH_fin:")
    tr_store(A, "LTRH")
    A("L_end:\ns_endpgm")

def build():
    A1 = Asm(); vm = gen_prologue(A1); gen_A(A1, vm); gen_H(A1, vm)
    t = header(["; @launch grid=(256,1,1) block=(512,1,1) lds=163840"])
    t += kstart(KN) + A1.finish() + RODATA + kdesc(KN)
    return t

if __name__ == "__main__":
    OPT.update(kv="5:K0,6:V0+K1,7:V1", hkv="K2+V2")
    for a in sys.argv[2:]:
        k, v = a.split("=")
        try: OPT[k] = int(v)
        except ValueError: OPT[k] = v
    open(sys.argv[1], "w").write(build())
```

```python
import sys, math, struct
from asmlib import *
from gen1 import f2u, make_srd, interleave, C_SCALE

OPT = {}
STF = ['', ' nt', ' sc1', ' sc0 sc1', ' sc1 nt', ' sc0 sc1 nt', ' sc0']
MB = 1024 * 1024
STAMP_OFF = 36 * MB
PART_OFF, FO_OFF, FP_OFF, EP_OFF = 16 * MB, 32 * MB, 32 * MB + 32768, 32 * MB + 65536
DBIAS = 7.0
U = 16384
KU = [i * U for i in range(5)]
VU = [(5 + i) * U for i in range(5)]
NR = 3
WOFFS = [U, 2 * U, 0]
XUN = [KU[4], VU[4], VU[0]]
UA = (KU[4], VU[4]); UC = (KU[3], VU[3]); UD = (KU[29 % NR], KU[30 % NR]); O1U = (VU[30 % NR], KU[31 % NR])
MF = "v_mfma_f32_16x16x32_bf16"

S_WAVE, S_W4, S_WOFF, S_ROLE, S_NON = 3, 4, 5, 6, 7
SK, SV, SX, SWQ, SWS, SWO = 8, 12, 16, 20, 24, 28
S_B, S_H0, S_HG, S_FAST = 32, 33, 34, 35
S_T0, S_T1, S_T2, S_T3 = 36, 37, 38, 39
S_KB0, S_KB1, S_XB, S_WQB, S_WM, S_XM = 40, 41, 42, 43, 44, 45
S_IT, S_KIDX, S_VIDX, S_D, S_ITEM = 46, 47, 64, 65, 66
S_C, S_MU, S_ONE, S_KH, S_RET = 68, 69, 70, 71, 72
SOUT = 76
S_HK = 80

def kvf(kind): return STF[OPT.get('kf' if kind == 'K' else 'vf', 1)]
def r4(a): return f"v[{a}:{a+3}]"
def r2(a): return f"v[{a}:{a+1}]"
def cost(i):
    return sum(8 if x.startswith("v_exp") else 4 for x in i.split("\n"))
def sched(A, mf, reads, valu, rgap=1, pre=()):
    reads = list(reads); valu = list(valu)
    tot = sum(map(cost, reads)) + sum(map(cost, valu))
    n = len(mf); used = 0
    for x in pre: A(x)
    for i, m in enumerate(mf):
        A(m)
        target = tot * (i + 1) / n
        k = 0
        while True:
            if reads and k < rgap and (k == 0 or used + 4 <= target + 4):
                x = reads.pop(0); k += 1
            elif valu and (used + cost(valu[0]) / 2 <= target or i == n - 1):
                x = valu.pop(0)
            elif reads and i == n - 1:
                x = reads.pop(0)
            else: break
            A(x); used += cost(x)
    assert not reads and not valu

TRV = 23
def tr(A, lane, level=1):
    if OPT.get("trace", 0) >= level: A(f"s_memrealtime s[94:95]\ns_waitcnt lgkmcnt(0)\nv_writelane_b32 v{TRV}, s94, {lane}")
def tr_store(A, lab):
    if not OPT.get("trace"): return
    A(f"s_lshl_b32 s90, s2, 8\ns_add_u32 s90, s90, {STAMP_OFF + 131072}\nv_lshlrev_b32 v2, 2, v1")
    A(f"s_cmp_lg_u32 s{S_W4}, 0\ns_cbranch_scc1 {lab}\nbuffer_store_dword v{TRV}, v2, s[{SWS}:{SWS+3}], s90 offen\n{lab}:")

L = 1
KA, VA, L0, LH = 2, 6, 14, 24
T, T2, T3, T4, OST = 16, 17, 18, 19, 20
Q, O, S0, S1, P0, P1, FA, FB, NM = 32, 64, 128, 144, 160, 168, 176, 208, 240
KD, VD, WD, XD, WOD, KH = 160, 164, 166, 168, 170, 172
XA0, XA1, WA = 26, 28, 240
TRB = 248

class VM:
    def __init__(self, A): self.A = A; self.out = []
    def issued(self, tag, n=1): self.out.extend([tag] * n)
    def wait(self, *tags):
        last = max((i for i, t in enumerate(self.out) if t in tags), default=None)
        if last is None: return
        n = len(self.out) - 1 - last
        assert n <= 63
        self.A(f"s_waitcnt vmcnt({n})")
        del self.out[:last + 1]

def gen_prologue(A):
    cf = STF[OPT.get("cf", 1)]
    A(f"s_cmp_ge_u32 s2, 256\ns_cbranch_scc1 L_end")
    if OPT.get("trace"): A("s_memrealtime s[92:93]")
    A("s_load_dwordx16 s[48:63], s[0:1], 0")
    A("v_and_b32 v1, 63, v0\nv_lshrrev_b32 v2, 6, v0")
    A(f"v_readfirstlane_b32 s{S_WAVE}, v2")
    A(f"v_lshrrev_b32 v{T}, 4, v{L}\nv_and_b32 v{T2}, 15, v{L}")
    A(f"v_lshlrev_b32 v{T3}, 1, v{T}\nv_xor_b32 v{T3}, v{T3}, v{T2}\nv_lshlrev_b32 v{T3}, 4, v{T3}")
    A(f"v_lshl_add_u32 v{WD}, v{T}, 13, v{T3}\nv_xor_b32 v{WD+1}, 128, v{WD}")
    A(f"v_lshl_add_u32 v{VD}, v{T}, 8, v{T3}\nv_xor_b32 v{VD+1}, 128, v{VD}\nv_lshl_add_u32 v{WOD}, v{T}, 10, v{T3}\nv_xor_b32 v{WOD+1}, 128, v{WOD}")
    A(f"v_lshrrev_b32 v{T4}, 3, v{L}\nv_and_b32 v{XD}, 7, v{L}\nv_lshrrev_b32 v{T3}, 1, v{T4}\nv_xor_b32 v{T3}, v{T3}, v{XD}")
    A(f"v_lshlrev_b32 v{T3}, 4, v{T3}\nv_lshl_add_u32 v{XD}, v{T4}, 10, v{T3}\nv_xor_b32 v{XD+1}, 64, v{XD}")
    A(f"s_and_b32 s{S_W4}, s{S_WAVE}, 3\ns_lshl_b32 s{S_WOFF}, s{S_W4}, 12\ns_lshr_b32 s{S_ROLE}, s{S_WAVE}, 2")
    A(f"s_bfe_u32 s{S_B}, s2, 0x10002\ns_lshl_b32 s{S_B}, s{S_B}, 3\ns_lshr_b32 s{S_T0}, s2, 5\ns_add_u32 s{S_B}, s{S_B}, s{S_T0}")
    A(f"s_and_b32 s{S_HG}, s2, 3\ns_lshl_b32 s{S_H0}, s{S_HG}, 3\ns_bfe_u32 s{S_T0}, s2, 0x20003\ns_lshl_b32 s{S_T0}, s{S_T0}, 1\ns_add_u32 s{S_H0}, s{S_H0}, s{S_T0}")
    A(f"s_add_u32 s{S_WQB}, s{S_H0}, s{S_ROLE}\ns_lshl_b32 s{S_WQB}, s{S_WQB}, 8\ns_lshl_b32 s{S_T0}, s{S_W4}, 17\ns_add_u32 s{S_WQB}, s{S_WQB}, s{S_T0}")
    A(f"s_lshl_b32 s{S_XB}, s{S_B}, 17\ns_lshl_b32 s{S_T0}, s{S_W4}, 15\ns_add_u32 s{S_XB}, s{S_XB}, s{S_T0}\ns_lshl_b32 s{S_T0}, s{S_ROLE}, 14\ns_add_u32 s{S_XB}, s{S_XB}, s{S_T0}")
    A(f"s_mul_i32 s{S_WM}, s{S_ROLE}, {VU[1]-KU[1]}\ns_add_u32 s{S_WM}, s{S_WM}, {KU[1]}\ns_add_u32 s{S_WM}, s{S_WM}, s{S_WOFF}")
    A(f"s_lshl_b32 s{S_XM}, s{S_ROLE}, 11\ns_add_u32 s{S_XM}, s{S_XM}, s{S_WOFF}")
    A(f"s_lshl_b32 s{S_T0}, s{S_B}, 5\ns_add_u32 s{S_T0}, s{S_T0}, s{S_H0}\ns_lshl_b32 s{S_KB0}, s{S_T0}, 18\ns_add_u32 s{S_KB0}, s{S_KB0}, s{S_WOFF}\ns_add_u32 s{S_KB1}, s{S_KB0}, 0x40000")
    A(f"s_lshl_b32 s{S_T0}, s{S_ROLE}, 11\ns_add_u32 s{S_KH}, s{S_KB0}, s{S_T0}")
    A("s_waitcnt lgkmcnt(0)")
    A(f"s_add_u32 s{S_T2}, s62, {EP_OFF}\ns_addc_u32 s{S_T3}, s63, 0\ns_load_dword s{S_NON}, s[{S_T2}:{S_T3}], 0")
    make_srd(A, SX, 48, 49, None, 2 * MB)
    make_srd(A, SWQ, 54, 55, None, 4 * MB)
    if OPT.get("trace"): A(f"v_writelane_b32 v{TRV}, s92, 63")
    vm = VM(A)
    def touch(lab):
        A(f"s_lshr_b32 s{S_T0}, s2, 3\ns_cmp_ge_u32 s{S_T0}, 16\ns_cbranch_scc1 L_tx{lab} ; KEEPVM")
        A(f"v_lshrrev_b32 v{T2}, 4, v{L}\nv_and_b32 v{T}, 15, v{L}\nv_lshlrev_b32 v{T}, 7, v{T}\nv_lshl_add_u32 v{T}, v{T2}, 13, v{T}")
        A(f"s_lshl_b32 s{S_T0}, s{S_T0}, 15\ns_lshl_b32 s{S_T1}, s{S_WAVE}, 19\ns_add_u32 s{S_T0}, s{S_T0}, s{S_T1}")
        A(f"s_lshl_b32 s{S_T1}, s{S_HG}, 11\ns_add_u32 s{S_T0}, s{S_T0}, s{S_T1}")
        A(f"buffer_load_dword v{T3}, v{T}, s[{SWQ}:{SWQ+3}], s{S_T0} offen{cf} ; NOTRACK\ns_branch L_td{lab} ; KEEPVM")
        A(f"L_tx{lab}: ; KEEPVM\nv_lshlrev_b32 v{T}, 10, v{L}\ns_sub_u32 s{S_T0}, s{S_T0}, 16\ns_lshl_b32 s{S_T0}, s{S_T0}, 16\ns_lshl_b32 s{S_T1}, s{S_WAVE}, 7\ns_add_u32 s{S_T0}, s{S_T0}, s{S_T1}")
        A(f"s_bfe_u32 s{S_T1}, s2, 0x10002\ns_lshl_b32 s{S_T1}, s{S_T1}, 20\ns_add_u32 s{S_T0}, s{S_T0}, s{S_T1}")
        A(f"buffer_load_dword v{T3}, v{T}, s[{SX}:{SX+3}], s{S_T0} offen{cf} ; NOTRACK\nL_td{lab}: ; KEEPVM")
    def touch_if(lo, hi, lab):
        if not OPT.get("touch", 1) or lo >= hi: return
        A(f"s_cmp_lt_u32 s{S_WAVE}, {lo}\ns_cbranch_scc1 L_ts{lab} ; KEEPVM\ns_cmp_ge_u32 s{S_WAVE}, {hi}\ns_cbranch_scc1 L_ts{lab} ; KEEPVM")
        touch(lab)
        A(f"L_ts{lab}: ; KEEPVM")
    def chunk_dmas(c):
        be = WOFFS[c % 3]
        r = []
        for j in range(4):
            r.append(f"s_add_u32 m0, s{S_WM}, {be + j*1024}\ns_add_u32 s{S_T1}, s{S_WQB}, {(64*c + 4*j)*8192}\nbuffer_load_dwordx4 v{WD + (j >> 1)}, s[{SWQ}:{SWQ+3}], s{S_T1} offen{cf} lds")
        for j in range(2):
            r.append(f"s_add_u32 m0, s{S_XM}, {XUN[c % 3] + j*1024}\ns_add_u32 s{S_T1}, s{S_XB}, {j*8192 + c*128}\nbuffer_load_dwordx4 v{XD + j}, s[{SX}:{SX+3}], s{S_T1} offen{cf} lds")
        return r
    def kv_half(item):
        kind, g = item[0], int(item[1])
        unit = (KU if kind == "K" else VU)[g % NR]
        srd = SK if kind == "K" else SV
        return [f"s_add_u32 s{S_T2}, s{S_KH}, {g*U}\ns_add_u32 m0, s{S_XM}, {unit}\nbuffer_load_dwordx4 v{(KH if kind == 'K' else VD) + p}, s[{srd}:{srd+3}], s{S_T2} offen offset:{p*1024}{kvf(kind)} lds" for p in range(2)]
    t1, t2 = OPT.get("t1", 2), OPT.get("t2", 4)
    touch_if(0, t1, "a")
    for x in chunk_dmas(0): A(x)
    vm.issued("C0", 6)
    touch_if(t1, t2, "b")
    make_srd(A, SK, 50, 51, None, 128 * MB)
    make_srd(A, SV, 52, 53, None, 128 * MB)
    for x in chunk_dmas(1): A(x)
    vm.issued("C1", 6)
    touch_if(t2, 8, "c")
    A(f"v_lshrrev_b32 v{T}, 4, v{L}\nv_and_b32 v{T2}, 15, v{L}")
    for j in range(4):
        A(f"v_add_u32 v{T4}, {4*j}, v{T}\nv_xor_b32 v{T4}, v{T4}, v{T2}\nv_lshlrev_b32 v{T4}, 4, v{T4}\nv_lshl_add_u32 v{KD+j}, v{T}, 8, v{T4}")
    A(f"s_cmp_eq_u32 s{S_ROLE}, 0\ns_cselect_b64 vcc, -1, 0")
    A(f"v_cndmask_b32 v{KH}, v{KD+2}, v{KD}, vcc\nv_cndmask_b32 v{KH+1}, v{KD+3}, v{KD+1}, vcc")
    make_srd(A, SWS, 62, 63, None, 40 * MB)
    make_srd(A, SOUT, 58, 59, None, 2 * MB)
    make_srd(A, SWO, 56, 57, None, 4 * MB)
    A(f"s_mov_b32 s{S_C}, {hex(f2u(C_SCALE))}\ns_mov_b32 s{S_MU}, {hex(-(NR-1)*U & 0xffffffff)}\ns_mov_b32 s{S_ONE}, 0x3f803f80")
    A(f"v_xor_b32 v{T4}, v{T}, v{T2}\nv_lshlrev_b32 v{T4}, 4, v{T4}\nv_lshl_add_u32 v{T4}, v{T2}, 8, v{T4}")
    for s in range(4): A(f"v_xor_b32 v{KA+s}, {64*s}, v{T4}")
    A(f"v_lshrrev_b32 v{T4}, 1, v{T2}\nv_xor_b32 v{T4}, v{T4}, v{T}\nv_lshlrev_b32 v{T4}, 4, v{T4}\nv_lshl_add_u32 v{T4}, v{T2}, 7, v{T4}")
    A(f"v_add_u32 v{T4}, s{S_WOFF}, v{T4}\nv_add_u32 v{XA0}, {KU[4]}, v{T4}\nv_xor_b32 v{XA0+1}, 64, v{XA0}")
    for s in range(2): A(f"v_add_u32 v{XA1+s}, {VU[4]-KU[4]}, v{XA0+s}")
    A(f"v_bfe_u32 v{T2}, v{L}, 2, 3\nv_and_b32 v{T4}, 3, v{L}\nv_lshlrev_b32 v{T4}, 3, v{T4}\nv_lshl_add_u32 v{T4}, v{T2}, 5, v{T4}")
    A(f"v_bfe_u32 v{T2}, v{L}, 2, 2\nv_lshl_add_u32 v{T4}, v{T2}, 8, v{T4}")
    A(f"v_lshl_add_u32 v{TRB}, v{T}, 10, v{T4}")
    A(f"v_lshl_add_u32 v{T4}, v{T}, 11, v{T4}\ns_sub_u32 s{S_T0}, s{S_WM}, s{S_WOFF}\nv_add_u32 v{T4}, s{S_T0}, v{T4}")
    A(f"v_add_u32 v{T2}, {VU[0]}, v{TRB}")
    for db in range(8): A(f"v_xor_b32 v{WA+db}, {32*db}, v{T4}\nv_xor_b32 v{VA+db}, {32*db}, v{T2}")
    A(f"v_lshlrev_b32 v{OST}, 4, v{L}")
    A(f"s_mov_b32 s{S_KIDX}, 0\ns_mov_b32 s{S_VIDX}, 0\ns_mov_b32 s{S_ITEM}, 0")
    A(f"s_waitcnt lgkmcnt(0)\ns_add_u32 s{S_NON}, s{S_NON}, 1")
    kvsched = {int(k): v for k, v in (x.split(":") for x in OPT["kv"].split(","))}
    XF = S0
    for r in range(64): A(f"v_mov_b32 v{O+r}, 0")
    def reads(i):
        c, s = i // 4, i % 4
        ks, dh = s // 2, s % 2
        XA, xo = (XA1, 0) if c % 3 == 1 else (XA0, XUN[c % 3] - KU[4])
        rd = []
        if dh == 0: rd += [f"ds_read_b128 {r4(XF+(ks*2+u)*4)}, v{XA+ks} offset:{xo + u*2048}" for u in range(2)]
        for b in range(4):
            d = FA + (s * 4 + b) * 4
            for x in range(2):
                rd.append(f"ds_read_b64_tr_b16 {r2(d+2*x)}, v{WA+dh*4+b} offset:{WOFFS[c % 3] + ks*8192 + x*1024}")
        return rd
    def mfs(i):
        s = i % 4
        ks, dh = s // 2, s % 2
        return [f"{MF} {r4(O+((dh*4+b)*2+u)*4)}, {r4(FA+(s*4+b)*4)}, {r4(XF+(ks*2+u)*4)}, {r4(O+((dh*4+b)*2+u)*4)}" for b in range(4) for u in range(2)]
    vm.wait("C0")
    A("s_barrier")
    tr(A, 40, 2)
    for r in reads(0) + reads(1): A(r)
    pend = chunk_dmas(2); vm.issued("C2", 6)
    for i in range(32):
        c, s = i // 4, i % 4
        m = mfs(i)
        if not (s == 3 and c < 7): A(f"s_waitcnt lgkmcnt({len(reads(i+1)) if i < 31 else 0})")
        if s == 2 and c < 7:
            A(m[0]); A(m[1]); m = m[2:]
            vm.wait(f"C{c+1}")
            A("s_waitcnt lgkmcnt(0)\ns_barrier")
            tr(A, 41 + c, 2)
            if c == OPT.get("prio", 6): A(f"s_cmp_ge_u32 s{S_WAVE}, 4\ns_cbranch_scc1 L_np\ns_setprio 2\nL_np: ; KEEPLG KEEPVM")
            if c + 3 < 8: pend += chunk_dmas(c + 3); vm.issued(f"C{c+3}", 6)
            for item in (kvsched[c + 1].split("+") if (c + 1) in kvsched else []):
                pend += kv_half(item); vm.issued(item, 2)
        fill = reads(i + 2) if i + 2 < 32 else []
        take = pend[:OPT.get("dper", 3)] if s != 1 else pend
        pend = pend[len(take):]
        k = len(m)
        per = [[] for _ in range(k)]
        for n_, x in enumerate(take): per[(2 * n_) % k].append(x)
        for n_, x in enumerate(fill): per[n_ * k // max(len(fill), 1)].append(x)
        for mm, fl in zip(m, per):
            A(mm)
            for x in fl: A(x)
    assert not pend
    A(f"s_cmp_ge_u32 s{S_WAVE}, 4\ns_cbranch_scc1 L_H")
    return vm

def swaps(A, x, y):
    for i in range(2): A(f"v_permlane32_swap_b32 v{x+i}, v{y+i}")
    for i in range(2): A(f"v_permlane16_swap_b32 v{x+i}, v{y+i}")
def q_convert(A):
    for s in range(4):
        for u in range(2):
            q = Q + (s * 2 + u) * 4
            for t in range(2):
                a = O + ((2 * s + t) * 2 + u) * 4
                for r in range(4): A(f"v_mul_f32 v{a+r}, s{S_C}, v{a+r}")
                A(f"v_cvt_pk_bf16_f32 v{q+2*t}, v{a}, v{a+1}\nv_cvt_pk_bf16_f32 v{q+2*t+1}, v{a+2}, v{a+3}")
        if s:
            for u in range(2): swaps(A, Q + ((s-1) * 2 + u) * 4, Q + ((s-1) * 2 + u) * 4 + 2)
    for u in range(2): swaps(A, Q + (6 + u) * 4, Q + (6 + u) * 4 + 2)

def slot_addr(A, dst, ua, ub):
    A(f"s_xor_b32 s{S_T1}, s{S_W4}, s{S_HG}\ns_and_b32 s{S_T0}, s{S_T1}, 1\ns_lshl_b32 s{S_T0}, s{S_T0}, 13\ns_lshr_b32 s{S_T1}, s{S_T1}, 1\ns_mul_i32 s{S_T1}, s{S_T1}, {(ub-ua) & 0xffffffff}")
    A(f"s_add_u32 s{S_T0}, s{S_T0}, s{S_T1}\ns_add_u32 s{S_T0}, s{S_T0}, {ua}\nv_add_u32 v{dst}, s{S_T0}, v{OST}")
def xw_value(A, s):
    A(f"s_getreg_b32 s{S_T0}, hwreg(HW_REG_XCC_ID, 0, 4)\ns_lshl_b32 s{s}, s{S_NON}, 4\ns_or_b32 s{s}, s{s}, s{S_T0}")
def mode_load(A, dst, PA):
    A(f"s_mov_b64 exec, 0x111\nbuffer_load_dword v{dst}, v{PA}, s[{SWS}:{SWS+3}], 0 offen offset:32 sc1 ; NOTRACK\ns_mov_b64 exec, -1")
def mode_eval(A, src):
    xw_value(A, S_T1)
    A(f"s_mov_b64 exec, 0x111\nv_cmp_ne_u32 vcc, s{S_T1}, v{src}\ns_mov_b64 exec, -1\ns_cmp_eq_u64 vcc, 0\ns_cselect_b32 s{S_FAST}, 1, 0")
    if OPT.get("slow"): A(f"s_mov_b32 s{S_FAST}, 0")
def pub_stores(A, F, item, lab, pre=None):
    A(f"s_lshl_b32 s{S_T0}, s{S_B}, 5\ns_add_u32 s{S_T0}, s{S_T0}, s{S_H0}\ns_add_u32 s{S_T0}, s{S_T0}, {item}\ns_lshl_b32 s{S_T0}, s{S_T0}, 2\ns_add_u32 s{S_T0}, s{S_T0}, s{S_W4}\ns_lshl_b32 s{S_T0}, s{S_T0}, 13\ns_add_u32 s{S_T1}, s{S_T0}, 4096")
    A(f"s_cmp_eq_u32 s{S_FAST}, 0\ns_cbranch_scc1 {lab}_s")
    for fl, end in (("", f"s_branch {lab}_e"), (" sc1", "")):
        if fl: A(f"{lab}_s:")
        for s in range(8):
            r = F[s] if isinstance(F, list) else F + 4 * s
            for x in (pre or {}).get(s, []): A(x)
            A(f"buffer_store_dwordx4 {r4(r)}, v{OST}, s[{SWS}:{SWS+3}], s{S_T0 if s < 4 else S_T1} offen offset:{(s%4)*1024}{fl}")
        if end: A(end)
    A(f"{lab}_e:")
def pub_flag(A, item, lab, tmp):
    A(f"s_lshl_b32 s{S_T2}, s2, 7\ns_lshl_b32 s{S_T3}, s{S_W4}, 2\ns_add_u32 s{S_T2}, s{S_T2}, s{S_T3}\ns_add_u32 s{S_T2}, s{S_T2}, {FO_OFF + item * 16}")
    A(f"v_mov_b32 v{tmp}, s{S_NON}\nv_mov_b32 v{tmp+1}, 0\ns_mov_b64 exec, 1")
    A(f"s_cmp_eq_u32 s{S_FAST}, 0\ns_cbranch_scc1 {lab}_s")
    A(f"buffer_store_dword v{tmp}, v{tmp+1}, s[{SWS}:{SWS+3}], s{S_T2} offen\ns_branch {lab}_e")
    A(f"{lab}_s:\nbuffer_store_dword v{tmp}, v{tmp+1}, s[{SWS}:{SWS+3}], s{S_T2} offen sc1\n{lab}_e:\ns_mov_b64 exec, -1")
def peer_setup(A, PA):
    A(f"s_bfe_u32 s{S_T2}, s2, 0x20003\ns_xor_b32 s{S_T3}, s{S_W4}, s{S_HG}")
    for d in range(1, 4):
        A(f"s_add_u32 s{S_T0}, s{S_T2}, {d}\ns_and_b32 s{S_T0}, s{S_T0}, 3\ns_lshl_b32 s{S_T0}, s{S_T0}, 1\ns_lshl_b32 s{S_T1}, s{S_HG}, 3\ns_add_u32 s{S_T0}, s{S_T0}, s{S_T1}")
        A(f"s_lshl_b32 s{S_T1}, s{S_B}, 5\ns_add_u32 s{S_T1}, s{S_T1}, s{S_T0}\ns_lshl_b32 s{S_T1}, s{S_T1}, 2\ns_add_u32 s{S_T1}, s{S_T1}, s{S_T3}\ns_lshl_b32 s{83+d}, s{S_T1}, 13")
    A(f"v_lshrrev_b32 v{T}, 2, v{L}\nv_add_u32 v{T}, s{S_T2}, v{T}\nv_add_u32 v{T}, 1, v{T}\nv_and_b32 v{T}, 3, v{T}\nv_lshlrev_b32 v{T}, 10, v{T}")
    A(f"s_and_b32 s{S_T0}, s2, 0xe7\ns_lshl_b32 s{S_T0}, s{S_T0}, 7\ns_add_u32 s{S_T0}, s{S_T0}, {FO_OFF}\nv_and_b32 v{PA}, 3, v{L}\nv_lshl_add_u32 v{PA}, v{PA}, 2, v{T}\nv_add_u32 v{PA}, s{S_T0}, v{PA}")
def poll_loop(A, lab, mask, off, PV_, PA):
    A(f"{lab}:\ns_mov_b64 exec, {hex(mask)}")
    A(f"buffer_load_dword v{PV_}, v{PA}, s[{SWS}:{SWS+3}], 0 offen offset:{off} sc1\ns_waitcnt vmcnt(0)")
    A(f"v_cmp_ne_u32 vcc, s{S_NON}, v{PV_}\ns_mov_b64 exec, -1\ns_cbranch_vccnz {lab}")
def dma_peer(A, d, o, ua, ub):
    A(f"s_and_b32 s{S_T0}, s{S_W4}, 1\ns_lshl_b32 s{S_T0}, s{S_T0}, 13\ns_lshr_b32 s{S_T1}, s{S_W4}, 1\ns_mul_i32 s{S_T1}, s{S_T1}, {(ub-ua) & 0xffffffff}\ns_add_u32 s{S_T0}, s{S_T0}, s{S_T1}")
    A(f"s_add_u32 m0, s{S_T0}, {ua}\ns_add_u32 s{S_T1}, s{83+d}, {o*32768}")
    for j in range(8):
        if j == 4: A(f"s_add_u32 m0, m0, 4096\ns_add_u32 s{S_T1}, s{S_T1}, 4096")
        A(f"buffer_load_dwordx4 v{OST}, s[{SWS}:{SWS+3}], s{S_T1} offen offset:{(j%4)*1024} sc1 lds")

def gen_A(A, vm0):
    vma = VM(A); vma.out = list(vm0.out)
    PVA, PAA, MDA = 26, 28, 27
    q_convert(A)
    vma.wait("K0")
    A("s_waitcnt lgkmcnt(0)\ns_barrier")
    def kread(F, half): return [f"ds_read_b128 {r4(F+(s*2+j)*4)}, v{KA+s} offset:{half*8192 + j*4096}" for s in range(4) for j in range(2)]
    def vread(F, half): return [f"ds_read_b64_tr_b16 {r2(F+db*4+2*x)}, v{VA+db} offset:{half*8192 + x*4096}" for db in range(8) for x in range(2)]
    def qk(F, S, first):
        r = []
        for s in range(4):
            for j in range(2):
                for u in range(2):
                    d = S + (j * 2 + u) * 4
                    c = r4(d) if s else ("0" if first else r4(NM + 4 * u))
                    r.append(f"{MF} {r4(d)}, {r4(F+(s*2+j)*4)}, {r4(Q+(s*2+u)*4)}, {c}")
        return r
    def pv(F, P): return [f"{MF} {r4(O+(db*2+u)*4)}, {r4(F+db*4)}, {r4(P+4*u)}, {r4(O+(db*2+u)*4)}" for db in range(8) for u in range(2)]
    E = [T, T2, T3, T4]
    CMP = [f"v_add_f32 v{T}, v{LH}, v{LH+1}", f"v_cmp_nge_f32 vcc, 1.0, v{T}"]
    if OPT.get("norare"): CMP = [f"v_cmp_lt_f32 vcc, v{L}, v{L}"]
    MRG = [f"v_add_f32 v{L0+u}, v{L0+u}, v{LH+u}" for u in range(2)]
    def sexp(S, P, part):
        def src(n): return S + (part * 2 + (n >> 1)) * 4 + 2 * (n & 1)
        def dst(n): return P + 4 * (n >> 1) + 2 * part + (n & 1)
        def fin(n): return [f"v_cvt_pk_bf16_f32 v{dst(n)}, v{E[(2*n)%4]}, v{E[(2*n+1)%4]}"]
        def dt(n):
            u = n >> 1
            return [f"v_dot2_f32_bf16 v{LH+u}, v{dst(n)}, s{S_ONE}, " + ("0" if (part == 0 and n % 2 == 0) else f"v{LH+u}")]
        r = []
        for n in range(4):
            r += [f"v_exp_f32 v{E[(2*n)%4]}, v{src(n)}", f"v_exp_f32 v{E[(2*n+1)%4]}, v{src(n)+1}"]
            if n > 0: r += fin(n - 1)
            if n > 1: r += dt(n - 2)
        return r + fin(3) + dt(2) + dt(3)
    def adv(idx, regs, n):
        return ([f"s_cmp_eq_u32 s{idx}, {(NR-1)*U}\ns_cselect_b32 s{S_D}, s{S_MU}, {U}\ns_add_u32 s{idx}, s{idx}, s{S_D}"] +
                [f"v_add_u32 v{regs+i}, s{S_D}, v{regs+i}" for i in range(n)])
    def allred(r, tmp, op):
        for sw in ("32", "16"):
            A(f"v_mov_b32 v{tmp}, v{r}\nv_permlane{sw}_swap_b32 v{r}, v{tmp}\n{op} v{r}, v{r}, v{tmp}")
    def xmax(S):
        for u, t in ((0, T), (1, T2)):
            a, b = S + 4 * u, S + 8 + 4 * u
            A(f"v_max3_f32 v{t}, v{a}, v{a+1}, v{a+2}\nv_max3_f32 v{t}, v{t}, v{a+3}, v{b}\nv_max3_f32 v{t}, v{t}, v{b+1}, v{b+2}\nv_max_f32 v{t}, v{t}, v{b+3}")
            allred(t, T3, "v_max_f32")
            A(f"v_ceil_f32 v{t}, v{t}\nv_add_f32 v{t}, {hex(f2u(DBIAS))}, v{t}")
    def ssub(S): return [f"v_sub_f32 v{S+i}, v{S+i}, v{T if (i >> 2) % 2 == 0 else T2}" for i in range(16)]
    def rare(S, P, SO):
        xmax(S)
        for t, k in ((T, T3), (T2, T4)):
            A(f"v_max_f32 v{t}, 0, v{t}\nv_cvt_i32_f32 v{k}, v{t}\nv_sub_u32 v{k}, 0, v{k}")
        for i in range(8): A(f"v_sub_f32 v{NM+i}, v{NM+i}, v{T if i < 4 else T2}")
        for x in ssub(S) + ssub(SO): A(x)
        A(f"v_ldexp_f32 v{L0}, v{L0}, v{T3}\nv_ldexp_f32 v{L0+1}, v{L0+1}, v{T4}")
        for i in range(64): A(f"v_ldexp_f32 v{O+i}, v{O+i}, v{T3 if (i >> 2) % 2 == 0 else T4}")
        for x in sexp(S, P, 0) + sexp(S, P, 1): A(x)
    A("LA_item:")
    for r in kread(FA, 0) + kread(FB, 1): A(r)
    zo = [f"v_mov_b32 v{O+r}, 0" for r in range(64)] + [f"v_mov_b32 v{L0}, 0", f"v_mov_b32 v{L0+1}, 0"]
    for z in zo[:30]: A(z)
    interleave(A, qk(FA, S0, True), zo[30:])
    for r in adv(S_KIDX, KA, 4): A(r)
    xmax(S0)
    for i in range(8): A(f"v_sub_f32 v{NM+i}, 0, v{T if i < 4 else T2}")
    for x in ssub(S0): A(x)
    interleave(A, qk(FB, S1, False), sexp(S0, P0, 0) + sexp(S0, P0, 1))
    A("s_waitcnt vmcnt(0) lgkmcnt(0)\ns_barrier")
    for r in kread(FA, 0): A(r)
    A(f"s_or_b32 s{S_T0}, s{S_W4}, s{S_ITEM}\ns_cmp_lg_u32 s{S_T0}, 0\ns_cbranch_scc1 LA_nocnt ; KEEPLG")
    xw_value(A, S_T1)
    A(f"v_mov_b32 v26, s{S_T1}\nv_mov_b32 v27, 0\ns_lshl_b32 s{S_T0}, s2, 7\ns_add_u32 s{S_T0}, s{S_T0}, {FO_OFF}\ns_mov_b64 exec, 1")
    A(f"buffer_store_dword v26, v27, s[{SWS}:{SWS+3}], s{S_T0} offen offset:32 sc1\ns_mov_b64 exec, -1")
    A("LA_nocnt: ; KEEPLG")
    A(f"s_mov_b32 s{S_IT}, 0")
    A("LA_loop: ; KEEPLG")
    W0 = ["s_waitcnt lgkmcnt(0)"]
    if OPT.get("nocomp"):
        A(f"s_waitcnt lgkmcnt(0)\ns_barrier\ns_add_u32 s{S_IT}, s{S_IT}, 1\ns_branch LA_back0")
    ak = adv(S_KIDX, KA, 4); av = adv(S_VIDX, VA, 8)
    sched(A, qk(FA, S0, False), vread(FB, 0), MRG + sexp(S1, P1, 0), rgap=2, pre=W0)
    sched(A, pv(FB, P0), kread(FA, 1), sexp(S1, P1, 1) + ak + CMP, pre=W0)
    A("s_cbranch_vccnz LA_rare1 ; KEEPLG")
    A("LA_back1: ; KEEPLG")
    sched(A, qk(FA, S1, False), vread(FB, 1), MRG + sexp(S0, P0, 0), rgap=2, pre=W0)
    p1 = pv(FB, P1)
    e4 = sexp(S0, P0, 1)
    A("s_waitcnt lgkmcnt(0)")
    interleave(A, p1[:4], e4[:3] + av[:3])
    A("s_barrier")
    sched(A, p1[4:], kread(FA, 0), e4[3:] + av[3:] + [f"s_add_u32 s{S_IT}, s{S_IT}, 1"] + CMP)
    A("s_cbranch_vccnz LA_rare0 ; KEEPLG")
    A("LA_back0: ; KEEPLG")
    A(f"s_cmp_lt_u32 s{S_IT}, 15\ns_cbranch_scc1 LA_loop ; KEEPLG")
    A("s_waitcnt lgkmcnt(0)")
    for r in vread(FB, 0): A(r)
    e = MRG + sexp(S1, P1, 0) + sexp(S1, P1, 1)
    for x in e[:7]: A(x)
    sched(A, pv(FB, P0), vread(FA, 1), e[7:] + CMP, rgap=2)
    A("s_cbranch_vccnz LA_rare2 ; KEEPLG")
    A("LA_back2: ; KEEPLG")
    for x in MRG: A(x)
    for m in pv(FA, P1)[:8]: A(m)
    for u in range(2):
        allred(L0 + u, T, "v_add_f32")
        A(f"v_rcp_f32 v{L0+u}, v{L0+u}")
    interleave(A, pv(FA, P1)[8:], av)
    for e_ in range(4):
        for u in range(2):
            for t in range(2):
                a = O + ((2 * e_ + t) * 2 + u) * 4
                for r in range(4): A(f"v_mul_f32 v{a+r}, v{a+r}, v{L0+u}")
                d = FB + (e_ * 2 + u) * 4 + 2 * t
                A(f"v_cvt_pk_bf16_f32 v{d}, v{a}, v{a+1}\nv_cvt_pk_bf16_f32 v{d+1}, v{a+2}, v{a+3}")
    A(f"s_cmp_lg_u32 s{S_ITEM}, 0\ns_cbranch_scc1 LA_done")
    A(f"s_mov_b32 s{S_ITEM}, 1")
    slot_addr(A, T, *UA)
    for s in range(8): A(f"ds_read_b128 {r4(Q+4*s)}, v{T} offset:{s*1024}")
    A("s_waitcnt lgkmcnt(0)")
    for s in range(8): A(f"ds_write_b128 v{T}, {r4(FB+4*s)} offset:{s*1024}")
    peer_setup(A, PAA)
    mode_load(A, MDA, PAA)
    A("s_waitcnt lgkmcnt(0)\ns_branch LA_item")
    A("LA_done:")
    slot_addr(A, T, *O1U)
    for s in range(8): A(f"ds_write_b128 v{T}, {r4(FB+4*s)} offset:{s*1024}")
    mode_eval(A, MDA)
    pub_stores(A, FB, 1, "LA_pub")
    A("s_waitcnt lgkmcnt(0)\ns_barrier")
    A("s_waitcnt vmcnt(0)")
    pub_flag(A, 1, "LA_fl", T)
    A("s_barrier")
    dma_peer(A, 2, 0, *UA); dma_peer(A, 3, 0, *UC)
    A("s_waitcnt vmcnt(0)\ns_barrier")
    poll_loop(A, "LA_q1", 0x0ff, 16, PVA, PAA)
    dma_peer(A, 1, 1, *O1U); dma_peer(A, 2, 1, *UD)
    poll_loop(A, "LA_q3", 0xf00, 16, PVA, PAA)
    A("s_barrier")
    dma_peer(A, 3, 1, *UA)
    A("s_waitcnt vmcnt(0)\ns_barrier")
    A("s_endpgm")
    A("LA_rare0:\ns_waitcnt lgkmcnt(0)")
    rare(S0, P0, S1)
    A("s_branch LA_back0")
    A(f"LA_rare1:\ns_waitcnt lgkmcnt(0)\ns_mov_b32 s{S_RET}, 0")
    A("LA_rare1b:")
    rare(S1, P1, S0)
    A(f"s_cmp_eq_u32 s{S_RET}, 0\ns_cbranch_scc1 LA_back1\ns_branch LA_back2")
    A(f"LA_rare2:\ns_waitcnt lgkmcnt(0)\ns_mov_b32 s{S_RET}, 1\ns_branch LA_rare1b")

def gen_H(A, vm):
    HKD, HVD, HWOD = 2, 6, 8
    OB3 = 10
    WT = 13
    WTR = [[13, 14, 15], [16, 17, 18]]
    PV_, PA, HT, HT2, MD = 19, 21, 22, 0, 22
    ACC, BP, OBUF = 24, 88, 232
    HKV = [(x[0], int(x[1])) for x in OPT.get("hkv", "").split("+") if x]
    A("L_H:")
    def seg(off): return 0 if off < 65536 - 8192 else (1 if off < 49152 + 65536 - 8192 else 2)
    regs = {"KD": KD, "VD": VD}
    def dma_kv(kind, g):
        if g >= 32: return
        base = S_KB0 if g < 16 else S_KB1
        unit = (KU if kind == "K" else VU)[g % NR]
        srd = SK if kind == "K" else SV
        A(f"s_add_u32 s{S_T0}, s{base}, {(g % 16) * U}\ns_add_u32 m0, s{S_WOFF}, {unit}")
        def four(fl):
            for j in range(4):
                A(f"buffer_load_dwordx4 v{regs['KD']+j if kind == 'K' else regs['VD']+(j&1)}, s[{srd}:{srd+3}], s{S_T0} offen offset:{j*1024}{fl} lds")
        sp = OPT.get("ksplit" if kind == "K" else "vsplit")
        if sp is None: four(kvf(kind))
        else:
            lo, hi = [int(x) for x in str(sp).split("-")]
            lab = f"LS{kind}{g}"
            A(f"s_sub_u32 s{S_T1}, s{S_B}, {lo}\ns_cmp_lt_u32 s{S_T1}, {hi-lo}\ns_cbranch_scc1 {lab}_d")
            four(" nt")
            A(f"s_branch {lab}_e\n{lab}_d: ; KEEPVM KEEPLG")
            four("")
            A(f"{lab}_e: ; KEEPVM KEEPLG")
        vm.issued(f"{kind}{g}", 4)
    def dma_blk(i, unit):
        slot = i // 2
        d, o = slot % 4, slot // 4
        koff = (o * 128 + (i % 2) * 64) * 1024
        for j in range(4):
            A(f"s_add_u32 m0, s{S_WOFF}, {unit + j*1024}\ns_add_u32 s{S_T1}, s{S_HK+d}, {koff + j*4096}")
            A(f"buffer_load_dwordx4 v{HWOD+(j&1)}, s[{SWO}:{SWO+3}], s{S_T1} offen{STF[OPT.get('wf', 1)]} lds")
        vm.issued(f"W{i}", 4)
    breg = {}
    def tr_blk(i, unit, pos):
        breg[i] = BP + pos * 16
        r = []
        for e_ in range(2):
            for t in range(2):
                for x in range(2):
                    off = unit + e_ * 8192 + x * 4096
                    sg = seg(off)
                    r.append(f"ds_read_b64_tr_b16 {r2(breg[i]+(e_*2+t)*4+2*x)}, v{WTR[t][sg]} offset:{off - sg*49152}")
        return r
    def compute(slot, ua, ub, extra=(), half=None):
        def rd(n):
            e_, qs = n // 8, n % 8
            qi, u = qs // 2, qs % 2
            off = (ua if qi < 2 else ub) + (qi % 2) * 8192 + (e_ * 2 + u) * 1024
            sg = seg(off)
            return f"ds_read_b128 {r4(OBUF+(n%6)*4)}, v{OB3+sg} offset:{off - sg*49152}"
        lo, hi = (0, 32) if half is None else (16 * half, 16 * half + 16)
        for n in range(lo, lo + 5): A(rd(n))
        for n in range(lo, hi):
            e_, qs = n // 8, n % 8
            for t in range(2):
                bf = breg[2 * slot + e_ // 2] + ((e_ % 2) * 2 + t) * 4
                a = ACC + (qs // 2) * 16 + (qs % 2) * 8 + t * 4
                A(f"{MF} {r4(a)}, {r4(bf)}, {r4(OBUF+(n%6)*4)}, " + ("0" if (slot == 0 and e_ == 0) else r4(a)))
            if n + 5 < hi: A(rd(n + 5))
        for x in extra: A(x)
    for k_, g_ in HKV: dma_kv(k_, g_)
    vm.wait("K0")
    A("s_waitcnt lgkmcnt(0)\ns_barrier")
    tr(A, 51, 2)
    ev = {g: [] for g in range(32)}
    SU = [KU[3], VU[3]]
    for i in range(9):
        gi = 1 + (i // 2) * 3 + (i % 2)
        ev[gi].append(("dma", i, SU[i % 2])); ev[gi + 2].append(("tr", i, SU[i % 2], i))
    go = OPT.get("go", 24)
    ev[go - 2].append(("dma", 9, SU[1])); ev[go - 1].append(("dma", 10, SU[0]))
    ev[go].append(("own0", 0)); ev[go + 1].append(("own0", 1))
    ev[go + 1].append(("tr", 9, SU[1], 0)); ev[go + 2].append(("tr", 10, SU[0], 1))
    ev[go + 3].append(("dma", 12, SU[1])); ev[go + 4].append(("dma", 11, SU[0]))
    RAW = {11: SU[0], 12: SU[1], 13: KU[29 % NR], 14: KU[30 % NR], 15: VU[29 % NR]}
    ev[29].append(("dma", 13, RAW[13])); ev[30] += [("dma", 14, RAW[14]), ("dma", 15, RAW[15])]
    gp = OPT.get("gp", 27)
    ev[gp - 3].append(("mode",))
    ev[gp].append(("pub",)); ev[gp + 2].append(("flag",))
    ev[29].append(("prepoll",)); ev[30].append(("try1",))
    for g in range(32):
        need = [f"W{e[1]}" for e in ev[g] if e[0] == "tr"] + ["ST" for e in ev[g] if e[0] == "flag"] + ["M" for e in ev[g] if e[0] == "pub"] + ["PL" for e in ev[g] if e[0] == "try1"]
        vm.wait(f"K{g+1}", f"V{g}", *need)
        A("s_waitcnt lgkmcnt(0)\ns_barrier")
        tr(A, g)
        if OPT.get("trace") == 1 and g < 31: A(f"s_memtime s[94:95]\ns_waitcnt lgkmcnt(0)\nv_writelane_b32 v{TRV}, s94, {32+g}")
        for e in ev[g]:
            if e[0] == "dma" and g < 29 and not OPT.get("nobg"): dma_blk(e[1], e[2])
            if e[0] == "mode": mode_load(A, MD, PA); vm.issued("M")
            if e[0] == "pub":
                mode_eval(A, MD)
                slot_addr(A, HT, *UA)
                fr = [OBUF + 4 * (s % 6) for s in range(8)]
                rdo = lambda s: f"ds_read_b128 {r4(fr[s])}, v{HT} offset:{s*1024}"
                pub_stores(A, fr, 0, "LH_pub", pre={0: [rdo(s) for s in range(6)], 6: [rdo(6), rdo(7)]})
                vm.issued("ST", 8)
            if e[0] == "flag": pub_flag(A, 0, "LH_fl", OBUF); vm.issued("F")
            if e[0] == "prepoll":
                A(f"s_mov_b64 exec, 0xfff\nbuffer_load_dword v{PV_}, v{PA}, s[{SWS}:{SWS+3}], 0 offen sc1 ; NOTRACK\ns_mov_b64 exec, -1"); vm.issued("PL")
            if e[0] == "try1":
                A(f"s_mov_b64 exec, 0xfff\nv_cmp_ne_u32 vcc, s{S_NON}, v{PV_}\ns_mov_b64 exec, -1\ns_mov_b32 s{S_RET}, 0\ns_cbranch_vccnz LH_nr")
                A(f"s_mov_b32 s{S_RET}, 1\nLH_nr:")
        dma_kv("K", g + NR)
        if g + NR - 1 > 2: dma_kv("V", g + NR - 1)
        for e in ev[g]:
            if e[0] == "dma" and g >= 29: dma_blk(e[1], e[2])
        if g == 30:
            A(f"s_cmp_eq_u32 s{S_RET}, 0\ns_cbranch_scc1 LH_n1")
            dma_peer(A, 1, 0, *UA)
            A("LH_n1:")
        if g == 0:
            q_convert(A)
            slot_addr(A, T, *UA)
            for s in range(8): A(f"ds_write_b128 v{T}, {r4(Q+4*s)} offset:{s*1024}")
            peer_setup(A, PA)
            for j in range(4): A(f"v_mov_b32 v{HKD+j}, v{KD+j}")
            for j in range(2): A(f"v_mov_b32 v{HVD+j}, v{VD+j}\nv_mov_b32 v{HWOD+j}, v{WOD+j}")
            regs.update(KD=HKD, VD=HVD)
            A(f"s_lshl_b32 s{S_T0}, s{S_W4}, 6\nv_xor_b32 v{WTR[0][0]}, s{S_T0}, v{TRB}\nv_xor_b32 v{WTR[1][0]}, 32, v{WTR[0][0]}\nv_mov_b32 v{OB3}, v{OST}")
            for i in (1, 2): A(f"v_add_u32 v{WTR[0][i]}, {i*49152}, v{WTR[0][0]}\nv_add_u32 v{WTR[1][i]}, {i*49152}, v{WTR[1][0]}\nv_add_u32 v{OB3+i}, {i*49152}, v{OST}")
            A(f"s_bfe_u32 s{S_T2}, s2, 0x20003")
            for d in range(4):
                A(f"s_add_u32 s{S_T0}, s{S_T2}, {d}\ns_and_b32 s{S_T0}, s{S_T0}, 3\ns_lshl_b32 s{S_T0}, s{S_T0}, 1\ns_lshl_b32 s{S_T1}, s{S_HG}, 3\ns_add_u32 s{S_T0}, s{S_T0}, s{S_T1}")
                A(f"s_lshl_b32 s{S_T0}, s{S_T0}, 17\ns_lshl_b32 s{S_T1}, s{S_T2}, 8\ns_add_u32 s{S_T0}, s{S_T0}, s{S_T1}\ns_lshl_b32 s{S_T1}, s{S_W4}, 14\ns_add_u32 s{S_HK+d}, s{S_T0}, s{S_T1}")
        for e in ev[g]:
            if e[0] == "own0": compute(0, *UA, half=e[1])
            if e[0] == "tr":
                for x in tr_blk(e[1], e[2], e[3]): A(x)
    A(f"s_cmp_lg_u32 s{S_RET}, 0\ns_cbranch_scc1 LH_p0d")
    poll_loop(A, "LH_p0", 0xfff, 0, PV_, PA)
    dma_peer(A, 1, 0, *UA)
    A("LH_p0d:\ns_waitcnt vmcnt(0) lgkmcnt(0)")
    tr(A, 52, 2)
    A("s_barrier")
    tr(A, 53, 2)
    def bar(i):
        A(f"s_waitcnt lgkmcnt(0)")
        tr(A, 30 + 2 * i, 2)
        A("s_barrier")
        tr(A, 31 + 2 * i, 2)
    compute(1, *UA, extra=tr_blk(11, RAW[11], 2) + tr_blk(12, RAW[12], 3))
    bar(1)
    compute(4, *O1U, extra=tr_blk(13, RAW[13], 8) + tr_blk(14, RAW[14], 0))
    bar(2)
    compute(2, *UA, extra=tr_blk(15, RAW[15], 4))
    compute(3, *UC)
    bar(3)
    compute(5, *O1U)
    compute(6, *UD)
    bar(4)
    compute(7, *UA)
    tr(A, 56, 2)
    X0, X1, X2 = 2, 3, 4
    A(f"s_bfe_u32 s{S_T2}, s2, 0x20003\ns_lshl_b32 s{S_T3}, s{S_B}, 2\ns_add_u32 s{S_T3}, s{S_T3}, s{S_T2}")
    for qi in range(1, 4):
        A(f"s_xor_b32 s{S_T0}, s{S_HG}, {qi}\ns_lshl_b32 s{S_T1}, s{S_T3}, 2\ns_add_u32 s{S_T0}, s{S_T0}, s{S_T1}\ns_lshl_b32 s{S_T0}, s{S_T0}, 2\ns_add_u32 s{S_T0}, s{S_T0}, s{S_HG}")
        A(f"s_lshl_b32 s{S_T0}, s{S_T0}, 2\ns_add_u32 s{S_T0}, s{S_T0}, s{S_W4}\ns_lshl_b32 s{S_T0}, s{S_T0}, 12\ns_add_u32 s{S_T0}, s{S_T0}, {PART_OFF}")
        for g in range(4):
            A(f"buffer_store_dwordx4 {r4(ACC+16*qi+4*g)}, v{OST}, s[{SWS}:{SWS+3}], s{S_T0} offen offset:{g*1024} sc1")
    A(f"v_add_u32 v{X0}, 1, v{L}\nv_xor_b32 v{X0}, s{S_HG}, v{X0}")
    A(f"s_lshl_b32 s{S_T0}, s{S_T3}, 9\ns_add_u32 s{S_T0}, s{S_T0}, {FP_OFF}\ns_lshl_b32 s{S_T1}, s{S_W4}, 2\ns_add_u32 s{S_T0}, s{S_T0}, s{S_T1}")
    A(f"s_lshl_b32 s{S_T1}, s{S_HG}, 4\ns_add_u32 s{S_T1}, s{S_T1}, s{S_T0}\nv_lshlrev_b32 v{X1}, 7, v{X0}\nv_add_u32 v{X1}, s{S_T1}, v{X1}")
    A(f"s_lshl_b32 s{S_T1}, s{S_HG}, 7\ns_add_u32 s{S_T1}, s{S_T1}, s{S_T0}\nv_lshlrev_b32 v{PA}, 4, v{X0}\nv_add_u32 v{PA}, s{S_T1}, v{PA}")
    A(f"v_mov_b32 v{X2}, s{S_NON}")
    A(f"s_waitcnt vmcnt(0)\ns_mov_b64 exec, 7\nbuffer_store_dword v{X2}, v{X1}, s[{SWS}:{SWS+3}], 0 offen sc1\ns_mov_b64 exec, -1")
    tr(A, 57, 2)
    poll_loop(A, "LH_p2", 7, 0, PV_, PA)
    tr(A, 58, 2)
    for qi in range(1, 4):
        A(f"s_xor_b32 s{S_T0}, s{S_HG}, {qi}\ns_lshl_b32 s{S_T1}, s{S_T3}, 2\ns_add_u32 s{S_T1}, s{S_T1}, s{S_HG}\ns_lshl_b32 s{S_T1}, s{S_T1}, 2\ns_add_u32 s{S_T0}, s{S_T0}, s{S_T1}")
        A(f"s_lshl_b32 s{S_T0}, s{S_T0}, 2\ns_add_u32 s{S_T0}, s{S_T0}, s{S_W4}\ns_lshl_b32 s{S_T0}, s{S_T0}, 12\ns_add_u32 s{S_T0}, s{S_T0}, {PART_OFF}")
        for g in range(4):
            A(f"buffer_load_dwordx4 {r4(BP+16*qi+4*g)}, v{OST}, s[{SWS}:{SWS+3}], s{S_T0} offen offset:{g*1024} sc1")
    A(f"v_and_b32 v{X0}, 15, v{L}\nv_lshlrev_b32 v{X0}, 10, v{X0}\nv_lshrrev_b32 v{X1}, 4, v{L}\nv_lshl_add_u32 v{X0}, v{X1}, 4, v{X0}")
    A(f"s_lshl_b32 s{S_T0}, s{S_B}, 17\ns_lshl_b32 s{S_T1}, s{S_HG}, 15\ns_add_u32 s{S_T0}, s{S_T0}, s{S_T1}\ns_lshl_b32 s{S_T1}, s{S_T2}, 8\ns_add_u32 s{S_T0}, s{S_T0}, s{S_T1}\ns_lshl_b32 s{S_T1}, s{S_W4}, 6\ns_add_u32 s{S_T0}, s{S_T0}, s{S_T1}\ns_add_u32 s{S_T1}, s{S_T0}, 16384")
    for qi in range(1, 4):
        for r in range(16): A(f"v_add_f32 v{ACC+r}, v{ACC+r}, v{BP+16*qi+r}")
    for j in range(8): A(f"v_cvt_pk_bf16_f32 v{OBUF+j}, v{ACC+2*j}, v{ACC+2*j+1}")
    for u in range(2): swaps(A, OBUF + 4 * u, OBUF + 4 * u + 2)
    A(f"buffer_store_dwordx4 {r4(OBUF)}, v{X0}, s[{SOUT}:{SOUT+3}], s{S_T0} offen")
    A(f"buffer_store_dwordx4 {r4(OBUF+4)}, v{X0}, s[{SOUT}:{SOUT+3}], s{S_T1} offen")
    if OPT.get("trace"): A("s_waitcnt vmcnt(0)")
    tr(A, 59, 2)
    A(f"s_or_b32 s{S_T0}, s2, s{S_W4}\ns_cmp_lg_u32 s{S_T0}, 0\ns_cbranch_scc1 LH_fin")
    A(f"v_lshlrev_b32 v{X0}, 7, v{L}\ns_and_b32 s{S_T2}, s{S_NON}, 0xfffffff\nLH_p3:")
    for i in range(4):
        A(f"s_mov_b32 s{S_T0}, {FO_OFF + i*8192}\nbuffer_load_dword v{OBUF+8+i}, v{X0}, s[{SWS}:{SWS+3}], s{S_T0} offen offset:32 sc1")
    A(f"s_mov_b64 s[{S_T0}:{S_T1}], 0")
    for i in range(4):
        A(f"v_lshrrev_b32 v{OBUF+8+i}, 4, v{OBUF+8+i}\nv_cmp_ne_u32 vcc, s{S_T2}, v{OBUF+8+i}\ns_or_b64 s[{S_T0}:{S_T1}], s[{S_T0}:{S_T1}], vcc")
    A(f"s_cmp_lg_u64 s[{S_T0}:{S_T1}], 0\ns_cbranch_scc1 LH_p3\nv_mov_b32 v{X0}, 0")
    A(f"v_mov_b32 v{X1}, s{S_NON}\ns_mov_b32 s{S_T0}, {EP_OFF}\ns_mov_b64 exec, 1\nbuffer_store_dword v{X1}, v{X0}, s[{SWS}:{SWS+3}], s{S_T0} offen sc1\ns_mov_b64 exec, -1")
    A("LH_fin:")
    tr_store(A, "LTRH")
    A("L_end:\ns_endpgm")

def build():
    A1 = Asm(); vm = gen_prologue(A1); gen_A(A1, vm); gen_H(A1, vm)
    t = header(["; @launch grid=(256,1,1) block=(512,1,1) lds=163840"])
    t += kstart(KN) + A1.finish() + RODATA + kdesc(KN)
    return t

if __name__ == "__main__":
    OPT.update(kv="5:K0,6:V0+K1,7:V1", hkv="K2+V2")
    for a in sys.argv[2:]:
        k, v = a.split("=")
        try: OPT[k] = int(v)
        except ValueError: OPT[k] = v
    open(sys.argv[1], "w").write(build())
```

```python
import sys, math, struct
from asmlib import *
from gen1 import f2u, make_srd, interleave, C_SCALE

OPT = {}
STF = ['', ' nt', ' sc1', ' sc0 sc1', ' sc1 nt', ' sc0 sc1 nt', ' sc0']
MB = 1024 * 1024
STAMP_OFF = 36 * MB
PART_OFF, FO_OFF, FP_OFF, EP_OFF = 16 * MB, 32 * MB, 32 * MB + 32768, 32 * MB + 65536
DBIAS = 7.0
U = 16384
KU = [i * U for i in range(5)]
VU = [(5 + i) * U for i in range(5)]
NR = 3
WOFFS = [U, 2 * U, 0]
XUN = [KU[4], VU[4], VU[0]]
UA = (KU[4], VU[4]); UC = (KU[3], VU[3]); UD = (KU[29 % NR], KU[30 % NR]); O1U = (VU[30 % NR], KU[31 % NR])
MF = "v_mfma_f32_16x16x32_bf16"

S_WAVE, S_W4, S_WOFF, S_ROLE, S_NON = 3, 4, 5, 6, 7
SK, SV, SX, SWQ, SWS, SWO = 8, 12, 16, 20, 24, 28
S_B, S_H0, S_HG, S_FAST = 32, 33, 34, 35
S_T0, S_T1, S_T2, S_T3 = 36, 37, 38, 39
S_KB0, S_KB1, S_XB, S_WQB, S_WM, S_XM = 40, 41, 42, 43, 44, 45
S_IT, S_KIDX, S_VIDX, S_D, S_ITEM = 46, 47, 64, 65, 66
S_C, S_MU, S_ONE, S_KH, S_RET = 68, 69, 70, 71, 72
SOUT = 76
S_HK = 80

def kvf(kind): return STF[OPT.get('kf' if kind == 'K' else 'vf', 1)]
def r4(a): return f"v[{a}:{a+3}]"
def r2(a): return f"v[{a}:{a+1}]"
def cost(i):
    return sum(8 if x.startswith("v_exp") else 4 for x in i.split("\n"))
def sched(A, mf, reads, valu, rgap=1, pre=()):
    reads = list(reads); valu = list(valu)
    tot = sum(map(cost, reads)) + sum(map(cost, valu))
    n = len(mf); used = 0
    for x in pre: A(x)
    for i, m in enumerate(mf):
        A(m)
        target = tot * (i + 1) / n
        k = 0
        while True:
            if reads and k < rgap and (k == 0 or used + 4 <= target + 4):
                x = reads.pop(0); k += 1
            elif valu and (used + cost(valu[0]) / 2 <= target or i == n - 1):
                x = valu.pop(0)
            elif reads and i == n - 1:
                x = reads.pop(0)
            else: break
            A(x); used += cost(x)
    assert not reads and not valu

TRV = 23
def tr(A, lane, level=1):
    if OPT.get("trace", 0) >= level: A(f"s_memrealtime s[94:95]\ns_waitcnt lgkmcnt(0)\nv_writelane_b32 v{TRV}, s94, {lane}")
def tr_store(A, lab):
    if not OPT.get("trace"): return
    A(f"s_lshl_b32 s90, s2, 8\ns_add_u32 s90, s90, {STAMP_OFF + 131072}\nv_lshlrev_b32 v2, 2, v1")
    A(f"s_cmp_lg_u32 s{S_W4}, 0\ns_cbranch_scc1 {lab}\nbuffer_store_dword v{TRV}, v2, s[{SWS}:{SWS+3}], s90 offen\n{lab}:")

L = 1
KA, VA, L0, LH = 2, 6, 14, 24
T, T2, T3, T4, OST = 16, 17, 18, 19, 20
Q, O, S0, S1, P0, P1, FA, FB, NM = 32, 64, 128, 144, 160, 168, 176, 208, 240
KD, VD, WD, XD, WOD, KH = 160, 164, 166, 168, 170, 172
XA0, XA1, WA = 26, 28, 240
TRB = 248

class VM:
    def __init__(self, A): self.A = A; self.out = []
    def issued(self, tag, n=1): self.out.extend([tag] * n)
    def wait(self, *tags):
        last = max((i for i, t in enumerate(self.out) if t in tags), default=None)
        if last is None: return
        n = len(self.out) - 1 - last
        assert n <= 63
        self.A(f"s_waitcnt vmcnt({n})")
        del self.out[:last + 1]

def gen_prologue(A):
    cf = STF[OPT.get("cf", 1)]
    A(f"s_cmp_ge_u32 s2, 256\ns_cbranch_scc1 L_end")
    if OPT.get("trace"): A("s_memrealtime s[92:93]")
    A("s_load_dwordx16 s[48:63], s[0:1], 0")
    A("v_and_b32 v1, 63, v0\nv_lshrrev_b32 v2, 6, v0")
    A(f"v_readfirstlane_b32 s{S_WAVE}, v2")
    A(f"s_cmp_lg_u32 s{S_WAVE}, 0\ns_cbranch_scc1 L_idw")
    A(f"s_getreg_b32 s{S_T2}, hwreg(HW_REG_XCC_ID, 0, 3)")
    if OPT.get("fakex"): A(f"s_and_b32 s{S_T2}, s{S_T2}, {OPT['fakex']}")
    A(f"s_lshl_b32 s{S_T3}, s{S_T2}, 5\ns_mov_b32 s{S_T1}, 1\ns_waitcnt lgkmcnt(0)")
    A(f"s_atomic_add s{S_T1}, s[60:61], s{S_T3} glc\ns_waitcnt lgkmcnt(0)")
    A(f"s_cmp_ge_u32 s{S_T1}, 32\ns_cbranch_scc1 L_ovf\nL_idok:")
    A(f"s_lshl_b32 s{S_T1}, s{S_T1}, 3\ns_or_b32 s{S_T1}, s{S_T1}, s{S_T2}\nv_mov_b32 v3, s{S_T1}\nv_mov_b32 v4, 0\nds_write_b32 v4, v3")
    A("L_idw:")
    A(f"v_lshrrev_b32 v{T}, 4, v{L}\nv_and_b32 v{T2}, 15, v{L}")
    A(f"v_lshlrev_b32 v{T3}, 1, v{T}\nv_xor_b32 v{T3}, v{T3}, v{T2}\nv_lshlrev_b32 v{T3}, 4, v{T3}")
    A(f"v_lshl_add_u32 v{WD}, v{T}, 13, v{T3}\nv_xor_b32 v{WD+1}, 128, v{WD}")
    A(f"v_lshl_add_u32 v{VD}, v{T}, 8, v{T3}\nv_xor_b32 v{VD+1}, 128, v{VD}\nv_lshl_add_u32 v{WOD}, v{T}, 10, v{T3}\nv_xor_b32 v{WOD+1}, 128, v{WOD}")
    A(f"v_lshrrev_b32 v{T4}, 3, v{L}\nv_and_b32 v{XD}, 7, v{L}\nv_lshrrev_b32 v{T3}, 1, v{T4}\nv_xor_b32 v{T3}, v{T3}, v{XD}")
    A(f"v_lshlrev_b32 v{T3}, 4, v{T3}\nv_lshl_add_u32 v{XD}, v{T4}, 10, v{T3}\nv_xor_b32 v{XD+1}, 64, v{XD}")
    A(f"s_and_b32 s{S_W4}, s{S_WAVE}, 3\ns_lshl_b32 s{S_WOFF}, s{S_W4}, 12\ns_lshr_b32 s{S_ROLE}, s{S_WAVE}, 2")
    A("s_waitcnt lgkmcnt(0)\ns_barrier\nv_mov_b32 v4, 0\nds_read_b32 v3, v4\ns_waitcnt lgkmcnt(0)\nv_readfirstlane_b32 s2, v3")
    A(f"s_bfe_u32 s{S_B}, s2, 0x10002\ns_lshl_b32 s{S_B}, s{S_B}, 3\ns_lshr_b32 s{S_T0}, s2, 5\ns_add_u32 s{S_B}, s{S_B}, s{S_T0}")
    A(f"s_and_b32 s{S_HG}, s2, 3\ns_lshl_b32 s{S_H0}, s{S_HG}, 3\ns_bfe_u32 s{S_T0}, s2, 0x20003\ns_lshl_b32 s{S_T0}, s{S_T0}, 1\ns_add_u32 s{S_H0}, s{S_H0}, s{S_T0}")
    A(f"s_add_u32 s{S_WQB}, s{S_H0}, s{S_ROLE}\ns_lshl_b32 s{S_WQB}, s{S_WQB}, 8\ns_lshl_b32 s{S_T0}, s{S_W4}, 17\ns_add_u32 s{S_WQB}, s{S_WQB}, s{S_T0}")
    A(f"s_lshl_b32 s{S_XB}, s{S_B}, 17\ns_lshl_b32 s{S_T0}, s{S_W4}, 15\ns_add_u32 s{S_XB}, s{S_XB}, s{S_T0}\ns_lshl_b32 s{S_T0}, s{S_ROLE}, 14\ns_add_u32 s{S_XB}, s{S_XB}, s{S_T0}")
    A(f"s_mul_i32 s{S_WM}, s{S_ROLE}, {VU[1]-KU[1]}\ns_add_u32 s{S_WM}, s{S_WM}, {KU[1]}\ns_add_u32 s{S_WM}, s{S_WM}, s{S_WOFF}")
    A(f"s_lshl_b32 s{S_XM}, s{S_ROLE}, 11\ns_add_u32 s{S_XM}, s{S_XM}, s{S_WOFF}")
    A(f"s_lshl_b32 s{S_T0}, s{S_B}, 5\ns_add_u32 s{S_T0}, s{S_T0}, s{S_H0}\ns_lshl_b32 s{S_KB0}, s{S_T0}, 18\ns_add_u32 s{S_KB0}, s{S_KB0}, s{S_WOFF}\ns_add_u32 s{S_KB1}, s{S_KB0}, 0x40000")
    A(f"s_lshl_b32 s{S_T0}, s{S_ROLE}, 11\ns_add_u32 s{S_KH}, s{S_KB0}, s{S_T0}")
    A("s_waitcnt lgkmcnt(0)")
    A(f"s_add_u32 s{S_T2}, s62, {EP_OFF}\ns_addc_u32 s{S_T3}, s63, 0\ns_load_dword s{S_NON}, s[{S_T2}:{S_T3}], 0")
    make_srd(A, SX, 48, 49, None, 2 * MB)
    make_srd(A, SWQ, 54, 55, None, 4 * MB)
    if OPT.get("trace"): A(f"v_writelane_b32 v{TRV}, s92, 63")
    vm = VM(A)
    def touch(lab):
        A(f"s_lshr_b32 s{S_T0}, s2, 3\ns_cmp_ge_u32 s{S_T0}, 16\ns_cbranch_scc1 L_tx{lab} ; KEEPVM")
        A(f"v_lshrrev_b32 v{T2}, 4, v{L}\nv_and_b32 v{T}, 15, v{L}\nv_lshlrev_b32 v{T}, 7, v{T}\nv_lshl_add_u32 v{T}, v{T2}, 13, v{T}")
        A(f"s_lshl_b32 s{S_T0}, s{S_T0}, 15\ns_lshl_b32 s{S_T1}, s{S_WAVE}, 19\ns_add_u32 s{S_T0}, s{S_T0}, s{S_T1}")
        A(f"s_lshl_b32 s{S_T1}, s{S_HG}, 11\ns_add_u32 s{S_T0}, s{S_T0}, s{S_T1}")
        A(f"buffer_load_dword v{T3}, v{T}, s[{SWQ}:{SWQ+3}], s{S_T0} offen{cf} ; NOTRACK\ns_branch L_td{lab} ; KEEPVM")
        A(f"L_tx{lab}: ; KEEPVM\nv_lshlrev_b32 v{T}, 10, v{L}\ns_sub_u32 s{S_T0}, s{S_T0}, 16\ns_lshl_b32 s{S_T0}, s{S_T0}, 16\ns_lshl_b32 s{S_T1}, s{S_WAVE}, 7\ns_add_u32 s{S_T0}, s{S_T0}, s{S_T1}")
        A(f"s_bfe_u32 s{S_T1}, s2, 0x10002\ns_lshl_b32 s{S_T1}, s{S_T1}, 20\ns_add_u32 s{S_T0}, s{S_T0}, s{S_T1}")
        A(f"buffer_load_dword v{T3}, v{T}, s[{SX}:{SX+3}], s{S_T0} offen{cf} ; NOTRACK\nL_td{lab}: ; KEEPVM")
    def touch_if(lo, hi, lab):
        if not OPT.get("touch", 1) or lo >= hi: return
        A(f"s_cmp_lt_u32 s{S_WAVE}, {lo}\ns_cbranch_scc1 L_ts{lab} ; KEEPVM\ns_cmp_ge_u32 s{S_WAVE}, {hi}\ns_cbranch_scc1 L_ts{lab} ; KEEPVM")
        touch(lab)
        A(f"L_ts{lab}: ; KEEPVM")
    def chunk_dmas(c):
        be = WOFFS[c % 3]
        r = []
        for j in range(4):
            r.append(f"s_add_u32 m0, s{S_WM}, {be + j*1024}\ns_add_u32 s{S_T1}, s{S_WQB}, {(64*c + 4*j)*8192}\nbuffer_load_dwordx4 v{WD + (j >> 1)}, s[{SWQ}:{SWQ+3}], s{S_T1} offen{cf} lds")
        for j in range(2):
            r.append(f"s_add_u32 m0, s{S_XM}, {XUN[c % 3] + j*1024}\ns_add_u32 s{S_T1}, s{S_XB}, {j*8192 + c*128}\nbuffer_load_dwordx4 v{XD + j}, s[{SX}:{SX+3}], s{S_T1} offen{cf} lds")
        return r
    def kv_half(item):
        kind, g = item[0], int(item[1])
        unit = (KU if kind == "K" else VU)[g % NR]
        srd = SK if kind == "K" else SV
        return [f"s_add_u32 s{S_T2}, s{S_KH}, {g*U}\ns_add_u32 m0, s{S_XM}, {unit}\nbuffer_load_dwordx4 v{(KH if kind == 'K' else VD) + p}, s[{srd}:{srd+3}], s{S_T2} offen offset:{p*1024}{kvf(kind)} lds" for p in range(2)]
    t1, t2 = OPT.get("t1", 2), OPT.get("t2", 4)
    touch_if(0, t1, "a")
    for x in chunk_dmas(0): A(x)
    vm.issued("C0", 6)
    touch_if(t1, t2, "b")
    make_srd(A, SK, 50, 51, None, 128 * MB)
    make_srd(A, SV, 52, 53, None, 128 * MB)
    for x in chunk_dmas(1): A(x)
    vm.issued("C1", 6)
    touch_if(t2, 8, "c")
    A(f"v_lshrrev_b32 v{T}, 4, v{L}\nv_and_b32 v{T2}, 15, v{L}")
    for j in range(4):
        A(f"v_add_u32 v{T4}, {4*j}, v{T}\nv_xor_b32 v{T4}, v{T4}, v{T2}\nv_lshlrev_b32 v{T4}, 4, v{T4}\nv_lshl_add_u32 v{KD+j}, v{T}, 8, v{T4}")
    A(f"s_cmp_eq_u32 s{S_ROLE}, 0\ns_cselect_b64 vcc, -1, 0")
    A(f"v_cndmask_b32 v{KH}, v{KD+2}, v{KD}, vcc\nv_cndmask_b32 v{KH+1}, v{KD+3}, v{KD+1}, vcc")
    make_srd(A, SWS, 62, 63, None, 40 * MB)
    make_srd(A, SOUT, 58, 59, None, 2 * MB)
    make_srd(A, SWO, 56, 57, None, 4 * MB)
    A(f"s_mov_b32 s{S_C}, {hex(f2u(C_SCALE))}\ns_mov_b32 s{S_MU}, {hex(-(NR-1)*U & 0xffffffff)}\ns_mov_b32 s{S_ONE}, 0x3f803f80")
    A(f"v_xor_b32 v{T4}, v{T}, v{T2}\nv_lshlrev_b32 v{T4}, 4, v{T4}\nv_lshl_add_u32 v{T4}, v{T2}, 8, v{T4}")
    for s in range(4): A(f"v_xor_b32 v{KA+s}, {64*s}, v{T4}")
    A(f"v_lshrrev_b32 v{T4}, 1, v{T2}\nv_xor_b32 v{T4}, v{T4}, v{T}\nv_lshlrev_b32 v{T4}, 4, v{T4}\nv_lshl_add_u32 v{T4}, v{T2}, 7, v{T4}")
    A(f"v_add_u32 v{T4}, s{S_WOFF}, v{T4}\nv_add_u32 v{XA0}, {KU[4]}, v{T4}\nv_xor_b32 v{XA0+1}, 64, v{XA0}")
    for s in range(2): A(f"v_add_u32 v{XA1+s}, {VU[4]-KU[4]}, v{XA0+s}")
    A(f"v_bfe_u32 v{T2}, v{L}, 2, 3\nv_and_b32 v{T4}, 3, v{L}\nv_lshlrev_b32 v{T4}, 3, v{T4}\nv_lshl_add_u32 v{T4}, v{T2}, 5, v{T4}")
    A(f"v_bfe_u32 v{T2}, v{L}, 2, 2\nv_lshl_add_u32 v{T4}, v{T2}, 8, v{T4}")
    A(f"v_lshl_add_u32 v{TRB}, v{T}, 10, v{T4}")
    A(f"v_lshl_add_u32 v{T4}, v{T}, 11, v{T4}\ns_sub_u32 s{S_T0}, s{S_WM}, s{S_WOFF}\nv_add_u32 v{T4}, s{S_T0}, v{T4}")
    A(f"v_add_u32 v{T2}, {VU[0]}, v{TRB}")
    for db in range(8): A(f"v_xor_b32 v{WA+db}, {32*db}, v{T4}\nv_xor_b32 v{VA+db}, {32*db}, v{T2}")
    A(f"v_lshlrev_b32 v{OST}, 4, v{L}")
    A(f"s_mov_b32 s{S_KIDX}, 0\ns_mov_b32 s{S_VIDX}, 0\ns_mov_b32 s{S_ITEM}, 0")
    A(f"s_waitcnt lgkmcnt(0)\ns_add_u32 s{S_NON}, s{S_NON}, 1")
    kvsched = {int(k): v for k, v in (x.split(":") for x in OPT["kv"].split(","))}
    XF = S0
    for r in range(64): A(f"v_mov_b32 v{O+r}, 0")
    def reads(i):
        c, s = i // 4, i % 4
        ks, dh = s // 2, s % 2
        XA, xo = (XA1, 0) if c % 3 == 1 else (XA0, XUN[c % 3] - KU[4])
        rd = []
        if dh == 0: rd += [f"ds_read_b128 {r4(XF+(ks*2+u)*4)}, v{XA+ks} offset:{xo + u*2048}" for u in range(2)]
        for b in range(4):
            d = FA + (s * 4 + b) * 4
            for x in range(2):
                rd.append(f"ds_read_b64_tr_b16 {r2(d+2*x)}, v{WA+dh*4+b} offset:{WOFFS[c % 3] + ks*8192 + x*1024}")
        return rd
    def mfs(i):
        s = i % 4
        ks, dh = s // 2, s % 2
        return [f"{MF} {r4(O+((dh*4+b)*2+u)*4)}, {r4(FA+(s*4+b)*4)}, {r4(XF+(ks*2+u)*4)}, {r4(O+((dh*4+b)*2+u)*4)}" for b in range(4) for u in range(2)]
    vm.wait("C0")
    A("s_barrier")
    tr(A, 40, 2)
    for r in reads(0) + reads(1): A(r)
    pend = chunk_dmas(2); vm.issued("C2", 6)
    for i in range(32):
        c, s = i // 4, i % 4
        m = mfs(i)
        if not (s == 3 and c < 7): A(f"s_waitcnt lgkmcnt({len(reads(i+1)) if i < 31 else 0})")
        if s == 2 and c < 7:
            A(m[0]); A(m[1]); m = m[2:]
            vm.wait(f"C{c+1}")
            A("s_waitcnt lgkmcnt(0)\ns_barrier")
            tr(A, 41 + c, 2)
            if c == OPT.get("prio", 6): A(f"s_cmp_ge_u32 s{S_WAVE}, 4\ns_cbranch_scc1 L_np\ns_setprio 2\nL_np: ; KEEPLG KEEPVM")
            if c + 3 < 8: pend += chunk_dmas(c + 3); vm.issued(f"C{c+3}", 6)
            for item in (kvsched[c + 1].split("+") if (c + 1) in kvsched else []):
                pend += kv_half(item); vm.issued(item, 2)
        fill = reads(i + 2) if i + 2 < 32 else []
        take = pend[:OPT.get("dper", 3)] if s != 1 else pend
        pend = pend[len(take):]
        k = len(m)
        per = [[] for _ in range(k)]
        for n_, x in enumerate(take): per[(2 * n_) % k].append(x)
        for n_, x in enumerate(fill): per[n_ * k // max(len(fill), 1)].append(x)
        for mm, fl in zip(m, per):
            A(mm)
            for x in fl: A(x)
    assert not pend
    A(f"s_cmp_ge_u32 s{S_WAVE}, 4\ns_cbranch_scc1 L_H")
    return vm

def swaps(A, x, y):
    for i in range(2): A(f"v_permlane32_swap_b32 v{x+i}, v{y+i}")
    for i in range(2): A(f"v_permlane16_swap_b32 v{x+i}, v{y+i}")
def q_convert(A):
    for s in range(4):
        for u in range(2):
            q = Q + (s * 2 + u) * 4
            for t in range(2):
                a = O + ((2 * s + t) * 2 + u) * 4
                for r in range(4): A(f"v_mul_f32 v{a+r}, s{S_C}, v{a+r}")
                A(f"v_cvt_pk_bf16_f32 v{q+2*t}, v{a}, v{a+1}\nv_cvt_pk_bf16_f32 v{q+2*t+1}, v{a+2}, v{a+3}")
        if s:
            for u in range(2): swaps(A, Q + ((s-1) * 2 + u) * 4, Q + ((s-1) * 2 + u) * 4 + 2)
    for u in range(2): swaps(A, Q + (6 + u) * 4, Q + (6 + u) * 4 + 2)

def slot_addr(A, dst, ua, ub):
    A(f"s_xor_b32 s{S_T1}, s{S_W4}, s{S_HG}\ns_and_b32 s{S_T0}, s{S_T1}, 1\ns_lshl_b32 s{S_T0}, s{S_T0}, 13\ns_lshr_b32 s{S_T1}, s{S_T1}, 1\ns_mul_i32 s{S_T1}, s{S_T1}, {(ub-ua) & 0xffffffff}")
    A(f"s_add_u32 s{S_T0}, s{S_T0}, s{S_T1}\ns_add_u32 s{S_T0}, s{S_T0}, {ua}\nv_add_u32 v{dst}, s{S_T0}, v{OST}")
def xw_value(A, s):
    A(f"s_getreg_b32 s{S_T0}, hwreg(HW_REG_XCC_ID, 0, 4)\ns_lshl_b32 s{s}, s{S_NON}, 4\ns_or_b32 s{s}, s{s}, s{S_T0}")
def mode_load(A, dst, PA):
    A(f"s_mov_b64 exec, 0x111\nbuffer_load_dword v{dst}, v{PA}, s[{SWS}:{SWS+3}], 0 offen offset:32 sc1 ; NOTRACK\ns_mov_b64 exec, -1")
def mode_eval(A, src):
    xw_value(A, S_T1)
    A(f"s_mov_b64 exec, 0x111\nv_cmp_ne_u32 vcc, s{S_T1}, v{src}\ns_mov_b64 exec, -1\ns_cmp_eq_u64 vcc, 0\ns_cselect_b32 s{S_FAST}, 1, 0")
    if OPT.get("slow"): A(f"s_mov_b32 s{S_FAST}, 0")
def pub_stores(A, F, item, lab, pre=None):
    A(f"s_lshl_b32 s{S_T0}, s{S_B}, 5\ns_add_u32 s{S_T0}, s{S_T0}, s{S_H0}\ns_add_u32 s{S_T0}, s{S_T0}, {item}\ns_lshl_b32 s{S_T0}, s{S_T0}, 2\ns_add_u32 s{S_T0}, s{S_T0}, s{S_W4}\ns_lshl_b32 s{S_T0}, s{S_T0}, 13\ns_add_u32 s{S_T1}, s{S_T0}, 4096")
    A(f"s_cmp_eq_u32 s{S_FAST}, 0\ns_cbranch_scc1 {lab}_s")
    for fl, end in (("", f"s_branch {lab}_e"), (" sc1", "")):
        if fl: A(f"{lab}_s:")
        for s in range(8):
            r = F[s] if isinstance(F, list) else F + 4 * s
            for x in (pre or {}).get(s, []): A(x)
            A(f"buffer_store_dwordx4 {r4(r)}, v{OST}, s[{SWS}:{SWS+3}], s{S_T0 if s < 4 else S_T1} offen offset:{(s%4)*1024}{fl}")
        if end: A(end)
    A(f"{lab}_e:")
def pub_flag(A, item, lab, tmp):
    A(f"s_lshl_b32 s{S_T2}, s2, 7\ns_lshl_b32 s{S_T3}, s{S_W4}, 2\ns_add_u32 s{S_T2}, s{S_T2}, s{S_T3}\ns_add_u32 s{S_T2}, s{S_T2}, {FO_OFF + item * 16}")
    A(f"v_mov_b32 v{tmp}, s{S_NON}\nv_mov_b32 v{tmp+1}, 0\ns_mov_b64 exec, 1")
    A(f"s_cmp_eq_u32 s{S_FAST}, 0\ns_cbranch_scc1 {lab}_s")
    A(f"buffer_store_dword v{tmp}, v{tmp+1}, s[{SWS}:{SWS+3}], s{S_T2} offen\ns_branch {lab}_e")
    A(f"{lab}_s:\nbuffer_store_dword v{tmp}, v{tmp+1}, s[{SWS}:{SWS+3}], s{S_T2} offen sc1\n{lab}_e:\ns_mov_b64 exec, -1")
def peer_setup(A, PA):
    A(f"s_bfe_u32 s{S_T2}, s2, 0x20003\ns_xor_b32 s{S_T3}, s{S_W4}, s{S_HG}")
    for d in range(1, 4):
        A(f"s_add_u32 s{S_T0}, s{S_T2}, {d}\ns_and_b32 s{S_T0}, s{S_T0}, 3\ns_lshl_b32 s{S_T0}, s{S_T0}, 1\ns_lshl_b32 s{S_T1}, s{S_HG}, 3\ns_add_u32 s{S_T0}, s{S_T0}, s{S_T1}")
        A(f"s_lshl_b32 s{S_T1}, s{S_B}, 5\ns_add_u32 s{S_T1}, s{S_T1}, s{S_T0}\ns_lshl_b32 s{S_T1}, s{S_T1}, 2\ns_add_u32 s{S_T1}, s{S_T1}, s{S_T3}\ns_lshl_b32 s{83+d}, s{S_T1}, 13")
    A(f"v_lshrrev_b32 v{T}, 2, v{L}\nv_add_u32 v{T}, s{S_T2}, v{T}\nv_add_u32 v{T}, 1, v{T}\nv_and_b32 v{T}, 3, v{T}\nv_lshlrev_b32 v{T}, 10, v{T}")
    A(f"s_and_b32 s{S_T0}, s2, 0xe7\ns_lshl_b32 s{S_T0}, s{S_T0}, 7\ns_add_u32 s{S_T0}, s{S_T0}, {FO_OFF}\nv_and_b32 v{PA}, 3, v{L}\nv_lshl_add_u32 v{PA}, v{PA}, 2, v{T}\nv_add_u32 v{PA}, s{S_T0}, v{PA}")
def poll_loop(A, lab, mask, off, PV_, PA):
    A(f"{lab}:\ns_mov_b64 exec, {hex(mask)}")
    A(f"buffer_load_dword v{PV_}, v{PA}, s[{SWS}:{SWS+3}], 0 offen offset:{off} sc1\ns_waitcnt vmcnt(0)")
    A(f"v_cmp_ne_u32 vcc, s{S_NON}, v{PV_}\ns_mov_b64 exec, -1\ns_cbranch_vccnz {lab}")
def dma_peer(A, d, o, ua, ub):
    A(f"s_and_b32 s{S_T0}, s{S_W4}, 1\ns_lshl_b32 s{S_T0}, s{S_T0}, 13\ns_lshr_b32 s{S_T1}, s{S_W4}, 1\ns_mul_i32 s{S_T1}, s{S_T1}, {(ub-ua) & 0xffffffff}\ns_add_u32 s{S_T0}, s{S_T0}, s{S_T1}")
    A(f"s_add_u32 m0, s{S_T0}, {ua}\ns_add_u32 s{S_T1}, s{83+d}, {o*32768}")
    for j in range(8):
        if j == 4: A(f"s_add_u32 m0, m0, 4096\ns_add_u32 s{S_T1}, s{S_T1}, 4096")
        A(f"buffer_load_dwordx4 v{OST}, s[{SWS}:{SWS+3}], s{S_T1} offen offset:{(j%4)*1024} sc1 lds")

def gen_A(A, vm0):
    vma = VM(A); vma.out = list(vm0.out)
    PVA, PAA, MDA = 26, 28, 27
    q_convert(A)
    vma.wait("K0")
    A("s_waitcnt lgkmcnt(0)\ns_barrier")
    def kread(F, half): return [f"ds_read_b128 {r4(F+(s*2+j)*4)}, v{KA+s} offset:{half*8192 + j*4096}" for s in range(4) for j in range(2)]
    def vread(F, half): return [f"ds_read_b64_tr_b16 {r2(F+db*4+2*x)}, v{VA+db} offset:{half*8192 + x*4096}" for db in range(8) for x in range(2)]
    def qk(F, S, first):
        r = []
        for s in range(4):
            for j in range(2):
                for u in range(2):
                    d = S + (j * 2 + u) * 4
                    c = r4(d) if s else ("0" if first else r4(NM + 4 * u))
                    r.append(f"{MF} {r4(d)}, {r4(F+(s*2+j)*4)}, {r4(Q+(s*2+u)*4)}, {c}")
        return r
    def pv(F, P): return [f"{MF} {r4(O+(db*2+u)*4)}, {r4(F+db*4)}, {r4(P+4*u)}, {r4(O+(db*2+u)*4)}" for db in range(8) for u in range(2)]
    E = [T, T2, T3, T4]
    CMP = [f"v_add_f32 v{T}, v{LH}, v{LH+1}", f"v_cmp_nge_f32 vcc, 1.0, v{T}"]
    if OPT.get("norare"): CMP = [f"v_cmp_lt_f32 vcc, v{L}, v{L}"]
    MRG = [f"v_add_f32 v{L0+u}, v{L0+u}, v{LH+u}" for u in range(2)]
    def sexp(S, P, part):
        def src(n): return S + (part * 2 + (n >> 1)) * 4 + 2 * (n & 1)
        def dst(n): return P + 4 * (n >> 1) + 2 * part + (n & 1)
        def fin(n): return [f"v_cvt_pk_bf16_f32 v{dst(n)}, v{E[(2*n)%4]}, v{E[(2*n+1)%4]}"]
        def dt(n):
            u = n >> 1
            return [f"v_dot2_f32_bf16 v{LH+u}, v{dst(n)}, s{S_ONE}, " + ("0" if (part == 0 and n % 2 == 0) else f"v{LH+u}")]
        r = []
        for n in range(4):
            r += [f"v_exp_f32 v{E[(2*n)%4]}, v{src(n)}", f"v_exp_f32 v{E[(2*n+1)%4]}, v{src(n)+1}"]
            if n > 0: r += fin(n - 1)
            if n > 1: r += dt(n - 2)
        return r + fin(3) + dt(2) + dt(3)
    def adv(idx, regs, n):
        return ([f"s_cmp_eq_u32 s{idx}, {(NR-1)*U}\ns_cselect_b32 s{S_D}, s{S_MU}, {U}\ns_add_u32 s{idx}, s{idx}, s{S_D}"] +
                [f"v_add_u32 v{regs+i}, s{S_D}, v{regs+i}" for i in range(n)])
    def allred(r, tmp, op):
        for sw in ("32", "16"):
            A(f"v_mov_b32 v{tmp}, v{r}\nv_permlane{sw}_swap_b32 v{r}, v{tmp}\n{op} v{r}, v{r}, v{tmp}")
    def xmax(S):
        for u, t in ((0, T), (1, T2)):
            a, b = S + 4 * u, S + 8 + 4 * u
            A(f"v_max3_f32 v{t}, v{a}, v{a+1}, v{a+2}\nv_max3_f32 v{t}, v{t}, v{a+3}, v{b}\nv_max3_f32 v{t}, v{t}, v{b+1}, v{b+2}\nv_max_f32 v{t}, v{t}, v{b+3}")
            allred(t, T3, "v_max_f32")
            A(f"v_ceil_f32 v{t}, v{t}\nv_add_f32 v{t}, {hex(f2u(DBIAS))}, v{t}")
    def ssub(S): return [f"v_sub_f32 v{S+i}, v{S+i}, v{T if (i >> 2) % 2 == 0 else T2}" for i in range(16)]
    def rare(S, P, SO):
        xmax(S)
        for t, k in ((T, T3), (T2, T4)):
            A(f"v_max_f32 v{t}, 0, v{t}\nv_cvt_i32_f32 v{k}, v{t}\nv_sub_u32 v{k}, 0, v{k}")
        for i in range(8): A(f"v_sub_f32 v{NM+i}, v{NM+i}, v{T if i < 4 else T2}")
        for x in ssub(S) + ssub(SO): A(x)
        A(f"v_ldexp_f32 v{L0}, v{L0}, v{T3}\nv_ldexp_f32 v{L0+1}, v{L0+1}, v{T4}")
        for i in range(64): A(f"v_ldexp_f32 v{O+i}, v{O+i}, v{T3 if (i >> 2) % 2 == 0 else T4}")
        for x in sexp(S, P, 0) + sexp(S, P, 1): A(x)
    A("LA_item:")
    for r in kread(FA, 0) + kread(FB, 1): A(r)
    zo = [f"v_mov_b32 v{O+r}, 0" for r in range(64)] + [f"v_mov_b32 v{L0}, 0", f"v_mov_b32 v{L0+1}, 0"]
    for z in zo[:30]: A(z)
    interleave(A, qk(FA, S0, True), zo[30:])
    for r in adv(S_KIDX, KA, 4): A(r)
    xmax(S0)
    for i in range(8): A(f"v_sub_f32 v{NM+i}, 0, v{T if i < 4 else T2}")
    for x in ssub(S0): A(x)
    interleave(A, qk(FB, S1, False), sexp(S0, P0, 0) + sexp(S0, P0, 1))
    A("s_waitcnt vmcnt(0) lgkmcnt(0)\ns_barrier")
    for r in kread(FA, 0): A(r)
    A(f"s_or_b32 s{S_T0}, s{S_W4}, s{S_ITEM}\ns_cmp_lg_u32 s{S_T0}, 0\ns_cbranch_scc1 LA_nocnt ; KEEPLG")
    xw_value(A, S_T1)
    A(f"v_mov_b32 v26, s{S_T1}\nv_mov_b32 v27, 0\ns_lshl_b32 s{S_T0}, s2, 7\ns_add_u32 s{S_T0}, s{S_T0}, {FO_OFF}\ns_mov_b64 exec, 1")
    A(f"buffer_store_dword v26, v27, s[{SWS}:{SWS+3}], s{S_T0} offen offset:32 sc1\ns_mov_b64 exec, -1")
    A("LA_nocnt: ; KEEPLG")
    A(f"s_mov_b32 s{S_IT}, 0")
    A("LA_loop: ; KEEPLG")
    W0 = ["s_waitcnt lgkmcnt(0)"]
    if OPT.get("nocomp"):
        A(f"s_waitcnt lgkmcnt(0)\ns_barrier\ns_add_u32 s{S_IT}, s{S_IT}, 1\ns_branch LA_back0")
    ak = adv(S_KIDX, KA, 4); av = adv(S_VIDX, VA, 8)
    sched(A, qk(FA, S0, False), vread(FB, 0), MRG + sexp(S1, P1, 0), rgap=2, pre=W0)
    sched(A, pv(FB, P0), kread(FA, 1), sexp(S1, P1, 1) + ak + CMP, pre=W0)
    A("s_cbranch_vccnz LA_rare1 ; KEEPLG")
    A("LA_back1: ; KEEPLG")
    sched(A, qk(FA, S1, False), vread(FB, 1), MRG + sexp(S0, P0, 0), rgap=2, pre=W0)
    p1 = pv(FB, P1)
    e4 = sexp(S0, P0, 1)
    A("s_waitcnt lgkmcnt(0)")
    interleave(A, p1[:4], e4[:3] + av[:3])
    A("s_barrier")
    sched(A, p1[4:], kread(FA, 0), e4[3:] + av[3:] + [f"s_add_u32 s{S_IT}, s{S_IT}, 1"] + CMP)
    A("s_cbranch_vccnz LA_rare0 ; KEEPLG")
    A("LA_back0: ; KEEPLG")
    A(f"s_cmp_lt_u32 s{S_IT}, 15\ns_cbranch_scc1 LA_loop ; KEEPLG")
    A("s_waitcnt lgkmcnt(0)")
    for r in vread(FB, 0): A(r)
    e = MRG + sexp(S1, P1, 0) + sexp(S1, P1, 1)
    for x in e[:7]: A(x)
    sched(A, pv(FB, P0), vread(FA, 1), e[7:] + CMP, rgap=2)
    A("s_cbranch_vccnz LA_rare2 ; KEEPLG")
    A("LA_back2: ; KEEPLG")
    for x in MRG: A(x)
    for m in pv(FA, P1)[:8]: A(m)
    for u in range(2):
        allred(L0 + u, T, "v_add_f32")
        A(f"v_rcp_f32 v{L0+u}, v{L0+u}")
    interleave(A, pv(FA, P1)[8:], av)
    for e_ in range(4):
        for u in range(2):
            for t in range(2):
                a = O + ((2 * e_ + t) * 2 + u) * 4
                for r in range(4): A(f"v_mul_f32 v{a+r}, v{a+r}, v{L0+u}")
                d = FB + (e_ * 2 + u) * 4 + 2 * t
                A(f"v_cvt_pk_bf16_f32 v{d}, v{a}, v{a+1}\nv_cvt_pk_bf16_f32 v{d+1}, v{a+2}, v{a+3}")
    A(f"s_cmp_lg_u32 s{S_ITEM}, 0\ns_cbranch_scc1 LA_done")
    A(f"s_mov_b32 s{S_ITEM}, 1")
    slot_addr(A, T, *UA)
    for s in range(8): A(f"ds_read_b128 {r4(Q+4*s)}, v{T} offset:{s*1024}")
    A("s_waitcnt lgkmcnt(0)")
    for s in range(8): A(f"ds_write_b128 v{T}, {r4(FB+4*s)} offset:{s*1024}")
    peer_setup(A, PAA)
    mode_load(A, MDA, PAA)
    A("s_waitcnt lgkmcnt(0)\ns_branch LA_item")
    A("LA_done:")
    slot_addr(A, T, *O1U)
    for s in range(8): A(f"ds_write_b128 v{T}, {r4(FB+4*s)} offset:{s*1024}")
    mode_eval(A, MDA)
    pub_stores(A, FB, 1, "LA_pub")
    A("s_waitcnt lgkmcnt(0)\ns_barrier")
    A("s_waitcnt vmcnt(0)")
    pub_flag(A, 1, "LA_fl", T)
    A("s_barrier")
    dma_peer(A, 2, 0, *UA); dma_peer(A, 3, 0, *UC)
    A("s_waitcnt vmcnt(0)\ns_barrier")
    poll_loop(A, "LA_q1", 0x0ff, 16, PVA, PAA)
    dma_peer(A, 1, 1, *O1U); dma_peer(A, 2, 1, *UD)
    poll_loop(A, "LA_q3", 0xf00, 16, PVA, PAA)
    A("s_barrier")
    dma_peer(A, 3, 1, *UA)
    A("s_waitcnt vmcnt(0)\ns_barrier")
    A("s_endpgm")
    A("LA_rare0:\ns_waitcnt lgkmcnt(0)")
    rare(S0, P0, S1)
    A("s_branch LA_back0")
    A(f"LA_rare1:\ns_waitcnt lgkmcnt(0)\ns_mov_b32 s{S_RET}, 0")
    A("LA_rare1b:")
    rare(S1, P1, S0)
    A(f"s_cmp_eq_u32 s{S_RET}, 0\ns_cbranch_scc1 LA_back1\ns_branch LA_back2")
    A(f"LA_rare2:\ns_waitcnt lgkmcnt(0)\ns_mov_b32 s{S_RET}, 1\ns_branch LA_rare1b")

def gen_H(A, vm):
    HKD, HVD, HWOD = 2, 6, 8
    OB3 = 10
    WT = 13
    WTR = [[13, 14, 15], [16, 17, 18]]
    PV_, PA, HT, HT2, MD = 19, 21, 22, 0, 22
    ACC, BP, OBUF = 24, 88, 232
    HKV = [(x[0], int(x[1])) for x in OPT.get("hkv", "").split("+") if x]
    A("L_H:")
    def seg(off): return 0 if off < 65536 - 8192 else (1 if off < 49152 + 65536 - 8192 else 2)
    regs = {"KD": KD, "VD": VD}
    def dma_kv(kind, g):
        if g >= 32: return
        base = S_KB0 if g < 16 else S_KB1
        unit = (KU if kind == "K" else VU)[g % NR]
        srd = SK if kind == "K" else SV
        A(f"s_add_u32 s{S_T0}, s{base}, {(g % 16) * U}\ns_add_u32 m0, s{S_WOFF}, {unit}")
        def four(fl):
            for j in range(4):
                A(f"buffer_load_dwordx4 v{regs['KD']+j if kind == 'K' else regs['VD']+(j&1)}, s[{srd}:{srd+3}], s{S_T0} offen offset:{j*1024}{fl} lds")
        sp = OPT.get("ksplit" if kind == "K" else "vsplit")
        if sp is None: four(kvf(kind))
        else:
            lo, hi = [int(x) for x in str(sp).split("-")]
            lab = f"LS{kind}{g}"
            A(f"s_sub_u32 s{S_T1}, s{S_B}, {lo}\ns_cmp_lt_u32 s{S_T1}, {hi-lo}\ns_cbranch_scc1 {lab}_d")
            four(" nt")
            A(f"s_branch {lab}_e\n{lab}_d: ; KEEPVM KEEPLG")
            four("")
            A(f"{lab}_e: ; KEEPVM KEEPLG")
        vm.issued(f"{kind}{g}", 4)
    def dma_blk(i, unit):
        slot = i // 2
        d, o = slot % 4, slot // 4
        koff = (o * 128 + (i % 2) * 64) * 1024
        for j in range(4):
            A(f"s_add_u32 m0, s{S_WOFF}, {unit + j*1024}\ns_add_u32 s{S_T1}, s{S_HK+d}, {koff + j*4096}")
            A(f"buffer_load_dwordx4 v{HWOD+(j&1)}, s[{SWO}:{SWO+3}], s{S_T1} offen{STF[OPT.get('wf', 1)]} lds")
        vm.issued(f"W{i}", 4)
    breg = {}
    def tr_blk(i, unit, pos):
        breg[i] = BP + pos * 16
        r = []
        for e_ in range(2):
            for t in range(2):
                for x in range(2):
                    off = unit + e_ * 8192 + x * 4096
                    sg = seg(off)
                    r.append(f"ds_read_b64_tr_b16 {r2(breg[i]+(e_*2+t)*4+2*x)}, v{WTR[t][sg]} offset:{off - sg*49152}")
        return r
    def compute(slot, ua, ub, extra=(), half=None):
        def rd(n):
            e_, qs = n // 8, n % 8
            qi, u = qs // 2, qs % 2
            off = (ua if qi < 2 else ub) + (qi % 2) * 8192 + (e_ * 2 + u) * 1024
            sg = seg(off)
            return f"ds_read_b128 {r4(OBUF+(n%6)*4)}, v{OB3+sg} offset:{off - sg*49152}"
        lo, hi = (0, 32) if half is None else (16 * half, 16 * half + 16)
        for n in range(lo, lo + 5): A(rd(n))
        for n in range(lo, hi):
            e_, qs = n // 8, n % 8
            for t in range(2):
                bf = breg[2 * slot + e_ // 2] + ((e_ % 2) * 2 + t) * 4
                a = ACC + (qs // 2) * 16 + (qs % 2) * 8 + t * 4
                A(f"{MF} {r4(a)}, {r4(bf)}, {r4(OBUF+(n%6)*4)}, " + ("0" if (slot == 0 and e_ == 0) else r4(a)))
            if n + 5 < hi: A(rd(n + 5))
        for x in extra: A(x)
    for k_, g_ in HKV: dma_kv(k_, g_)
    vm.wait("K0")
    A("s_waitcnt lgkmcnt(0)\ns_barrier")
    tr(A, 51, 2)
    ev = {g: [] for g in range(32)}
    SU = [KU[3], VU[3]]
    for i in range(9):
        gi = 1 + (i // 2) * 3 + (i % 2)
        ev[gi].append(("dma", i, SU[i % 2])); ev[gi + 2].append(("tr", i, SU[i % 2], i))
    go = OPT.get("go", 24)
    ev[go - 2].append(("dma", 9, SU[1])); ev[go - 1].append(("dma", 10, SU[0]))
    ev[go].append(("own0", 0)); ev[go + 1].append(("own0", 1))
    ev[go + 1].append(("tr", 9, SU[1], 0)); ev[go + 2].append(("tr", 10, SU[0], 1))
    ev[go + 3].append(("dma", 12, SU[1])); ev[go + 4].append(("dma", 11, SU[0]))
    RAW = {11: SU[0], 12: SU[1], 13: KU[29 % NR], 14: KU[30 % NR], 15: VU[29 % NR]}
    ev[29].append(("dma", 13, RAW[13])); ev[30] += [("dma", 14, RAW[14]), ("dma", 15, RAW[15])]
    gp = OPT.get("gp", 27)
    ev[gp - 3].append(("mode",))
    ev[gp].append(("pub",)); ev[gp + 2].append(("flag",))
    ev[29].append(("prepoll",)); ev[30].append(("try1",))
    for g in range(32):
        need = [f"W{e[1]}" for e in ev[g] if e[0] == "tr"] + ["ST" for e in ev[g] if e[0] == "flag"] + ["M" for e in ev[g] if e[0] == "pub"] + ["PL" for e in ev[g] if e[0] == "try1"]
        vm.wait(f"K{g+1}", f"V{g}", *need)
        A("s_waitcnt lgkmcnt(0)\ns_barrier")
        tr(A, g)
        if OPT.get("trace") == 1 and g < 31: A(f"s_memtime s[94:95]\ns_waitcnt lgkmcnt(0)\nv_writelane_b32 v{TRV}, s94, {32+g}")
        for e in ev[g]:
            if e[0] == "dma" and g < 29 and not OPT.get("nobg"): dma_blk(e[1], e[2])
            if e[0] == "mode": mode_load(A, MD, PA); vm.issued("M")
            if e[0] == "pub":
                mode_eval(A, MD)
                slot_addr(A, HT, *UA)
                fr = [OBUF + 4 * (s % 6) for s in range(8)]
                rdo = lambda s: f"ds_read_b128 {r4(fr[s])}, v{HT} offset:{s*1024}"
                pub_stores(A, fr, 0, "LH_pub", pre={0: [rdo(s) for s in range(6)], 6: [rdo(6), rdo(7)]})
                vm.issued("ST", 8)
            if e[0] == "flag": pub_flag(A, 0, "LH_fl", OBUF); vm.issued("F")
            if e[0] == "prepoll":
                A(f"s_mov_b64 exec, 0xfff\nbuffer_load_dword v{PV_}, v{PA}, s[{SWS}:{SWS+3}], 0 offen sc1 ; NOTRACK\ns_mov_b64 exec, -1"); vm.issued("PL")
            if e[0] == "try1":
                A(f"s_mov_b64 exec, 0xfff\nv_cmp_ne_u32 vcc, s{S_NON}, v{PV_}\ns_mov_b64 exec, -1\ns_mov_b32 s{S_RET}, 0\ns_cbranch_vccnz LH_nr")
                A(f"s_mov_b32 s{S_RET}, 1\nLH_nr:")
        dma_kv("K", g + NR)
        if g + NR - 1 > 2: dma_kv("V", g + NR - 1)
        for e in ev[g]:
            if e[0] == "dma" and g >= 29: dma_blk(e[1], e[2])
        if g == 30:
            A(f"s_cmp_eq_u32 s{S_RET}, 0\ns_cbranch_scc1 LH_n1")
            dma_peer(A, 1, 0, *UA)
            A("LH_n1:")
        if g == 0:
            q_convert(A)
            slot_addr(A, T, *UA)
            for s in range(8): A(f"ds_write_b128 v{T}, {r4(Q+4*s)} offset:{s*1024}")
            peer_setup(A, PA)
            for j in range(4): A(f"v_mov_b32 v{HKD+j}, v{KD+j}")
            for j in range(2): A(f"v_mov_b32 v{HVD+j}, v{VD+j}\nv_mov_b32 v{HWOD+j}, v{WOD+j}")
            regs.update(KD=HKD, VD=HVD)
            A(f"s_lshl_b32 s{S_T0}, s{S_W4}, 6\nv_xor_b32 v{WTR[0][0]}, s{S_T0}, v{TRB}\nv_xor_b32 v{WTR[1][0]}, 32, v{WTR[0][0]}\nv_mov_b32 v{OB3}, v{OST}")
            for i in (1, 2): A(f"v_add_u32 v{WTR[0][i]}, {i*49152}, v{WTR[0][0]}\nv_add_u32 v{WTR[1][i]}, {i*49152}, v{WTR[1][0]}\nv_add_u32 v{OB3+i}, {i*49152}, v{OST}")
            A(f"s_bfe_u32 s{S_T2}, s2, 0x20003")
            for d in range(4):
                A(f"s_add_u32 s{S_T0}, s{S_T2}, {d}\ns_and_b32 s{S_T0}, s{S_T0}, 3\ns_lshl_b32 s{S_T0}, s{S_T0}, 1\ns_lshl_b32 s{S_T1}, s{S_HG}, 3\ns_add_u32 s{S_T0}, s{S_T0}, s{S_T1}")
                A(f"s_lshl_b32 s{S_T0}, s{S_T0}, 17\ns_lshl_b32 s{S_T1}, s{S_T2}, 8\ns_add_u32 s{S_T0}, s{S_T0}, s{S_T1}\ns_lshl_b32 s{S_T1}, s{S_W4}, 14\ns_add_u32 s{S_HK+d}, s{S_T0}, s{S_T1}")
        for e in ev[g]:
            if e[0] == "own0": compute(0, *UA, half=e[1])
            if e[0] == "tr":
                for x in tr_blk(e[1], e[2], e[3]): A(x)
    A(f"s_cmp_lg_u32 s{S_RET}, 0\ns_cbranch_scc1 LH_p0d")
    poll_loop(A, "LH_p0", 0xfff, 0, PV_, PA)
    dma_peer(A, 1, 0, *UA)
    A("LH_p0d:\ns_waitcnt vmcnt(0) lgkmcnt(0)")
    tr(A, 52, 2)
    A("s_barrier")
    tr(A, 53, 2)
    def bar(i):
        A(f"s_waitcnt lgkmcnt(0)")
        tr(A, 30 + 2 * i, 2)
        A("s_barrier")
        tr(A, 31 + 2 * i, 2)
    compute(1, *UA, extra=tr_blk(11, RAW[11], 2) + tr_blk(12, RAW[12], 3))
    bar(1)
    compute(4, *O1U, extra=tr_blk(13, RAW[13], 8) + tr_blk(14, RAW[14], 0))
    bar(2)
    compute(2, *UA, extra=tr_blk(15, RAW[15], 4))
    compute(3, *UC)
    bar(3)
    compute(5, *O1U)
    compute(6, *UD)
    bar(4)
    compute(7, *UA)
    tr(A, 56, 2)
    X0, X1, X2 = 2, 3, 4
    A(f"s_bfe_u32 s{S_T2}, s2, 0x20003\ns_lshl_b32 s{S_T3}, s{S_B}, 2\ns_add_u32 s{S_T3}, s{S_T3}, s{S_T2}")
    for qi in range(1, 4):
        A(f"s_xor_b32 s{S_T0}, s{S_HG}, {qi}\ns_lshl_b32 s{S_T1}, s{S_T3}, 2\ns_add_u32 s{S_T0}, s{S_T0}, s{S_T1}\ns_lshl_b32 s{S_T0}, s{S_T0}, 2\ns_add_u32 s{S_T0}, s{S_T0}, s{S_HG}")
        A(f"s_lshl_b32 s{S_T0}, s{S_T0}, 2\ns_add_u32 s{S_T0}, s{S_T0}, s{S_W4}\ns_lshl_b32 s{S_T0}, s{S_T0}, 12\ns_add_u32 s{S_T0}, s{S_T0}, {PART_OFF}")
        for g in range(4):
            A(f"buffer_store_dwordx4 {r4(ACC+16*qi+4*g)}, v{OST}, s[{SWS}:{SWS+3}], s{S_T0} offen offset:{g*1024} sc1")
    A(f"v_add_u32 v{X0}, 1, v{L}\nv_xor_b32 v{X0}, s{S_HG}, v{X0}")
    A(f"s_lshl_b32 s{S_T0}, s{S_T3}, 9\ns_add_u32 s{S_T0}, s{S_T0}, {FP_OFF}\ns_lshl_b32 s{S_T1}, s{S_W4}, 2\ns_add_u32 s{S_T0}, s{S_T0}, s{S_T1}")
    A(f"s_lshl_b32 s{S_T1}, s{S_HG}, 4\ns_add_u32 s{S_T1}, s{S_T1}, s{S_T0}\nv_lshlrev_b32 v{X1}, 7, v{X0}\nv_add_u32 v{X1}, s{S_T1}, v{X1}")
    A(f"s_lshl_b32 s{S_T1}, s{S_HG}, 7\ns_add_u32 s{S_T1}, s{S_T1}, s{S_T0}\nv_lshlrev_b32 v{PA}, 4, v{X0}\nv_add_u32 v{PA}, s{S_T1}, v{PA}")
    A(f"v_mov_b32 v{X2}, s{S_NON}")
    A(f"s_waitcnt vmcnt(0)\ns_mov_b64 exec, 7\nbuffer_store_dword v{X2}, v{X1}, s[{SWS}:{SWS+3}], 0 offen sc1\ns_mov_b64 exec, -1")
    tr(A, 57, 2)
    poll_loop(A, "LH_p2", 7, 0, PV_, PA)
    tr(A, 58, 2)
    for qi in range(1, 4):
        A(f"s_xor_b32 s{S_T0}, s{S_HG}, {qi}\ns_lshl_b32 s{S_T1}, s{S_T3}, 2\ns_add_u32 s{S_T1}, s{S_T1}, s{S_HG}\ns_lshl_b32 s{S_T1}, s{S_T1}, 2\ns_add_u32 s{S_T0}, s{S_T0}, s{S_T1}")
        A(f"s_lshl_b32 s{S_T0}, s{S_T0}, 2\ns_add_u32 s{S_T0}, s{S_T0}, s{S_W4}\ns_lshl_b32 s{S_T0}, s{S_T0}, 12\ns_add_u32 s{S_T0}, s{S_T0}, {PART_OFF}")
        for g in range(4):
            A(f"buffer_load_dwordx4 {r4(BP+16*qi+4*g)}, v{OST}, s[{SWS}:{SWS+3}], s{S_T0} offen offset:{g*1024} sc1")
    A(f"v_and_b32 v{X0}, 15, v{L}\nv_lshlrev_b32 v{X0}, 10, v{X0}\nv_lshrrev_b32 v{X1}, 4, v{L}\nv_lshl_add_u32 v{X0}, v{X1}, 4, v{X0}")
    A(f"s_lshl_b32 s{S_T0}, s{S_B}, 17\ns_lshl_b32 s{S_T1}, s{S_HG}, 15\ns_add_u32 s{S_T0}, s{S_T0}, s{S_T1}\ns_lshl_b32 s{S_T1}, s{S_T2}, 8\ns_add_u32 s{S_T0}, s{S_T0}, s{S_T1}\ns_lshl_b32 s{S_T1}, s{S_W4}, 6\ns_add_u32 s{S_T0}, s{S_T0}, s{S_T1}\ns_add_u32 s{S_T1}, s{S_T0}, 16384")
    for qi in range(1, 4):
        for r in range(16): A(f"v_add_f32 v{ACC+r}, v{ACC+r}, v{BP+16*qi+r}")
    for j in range(8): A(f"v_cvt_pk_bf16_f32 v{OBUF+j}, v{ACC+2*j}, v{ACC+2*j+1}")
    for u in range(2): swaps(A, OBUF + 4 * u, OBUF + 4 * u + 2)
    A(f"buffer_store_dwordx4 {r4(OBUF)}, v{X0}, s[{SOUT}:{SOUT+3}], s{S_T0} offen")
    A(f"buffer_store_dwordx4 {r4(OBUF+4)}, v{X0}, s[{SOUT}:{SOUT+3}], s{S_T1} offen")
    if OPT.get("trace"): A("s_waitcnt vmcnt(0)")
    tr(A, 59, 2)
    A(f"s_or_b32 s{S_T0}, s2, s{S_W4}\ns_cmp_lg_u32 s{S_T0}, 0\ns_cbranch_scc1 LH_fin")
    A(f"v_lshlrev_b32 v{X0}, 7, v{L}\ns_and_b32 s{S_T2}, s{S_NON}, 0xfffffff\nLH_p3:")
    for i in range(4):
        A(f"s_mov_b32 s{S_T0}, {FO_OFF + i*8192}\nbuffer_load_dword v{OBUF+8+i}, v{X0}, s[{SWS}:{SWS+3}], s{S_T0} offen offset:32 sc1")
    A(f"s_mov_b64 s[{S_T0}:{S_T1}], 0")
    for i in range(4):
        A(f"v_lshrrev_b32 v{OBUF+8+i}, 4, v{OBUF+8+i}\nv_cmp_ne_u32 vcc, s{S_T2}, v{OBUF+8+i}\ns_or_b64 s[{S_T0}:{S_T1}], s[{S_T0}:{S_T1}], vcc")
    A(f"s_cmp_lg_u64 s[{S_T0}:{S_T1}], 0\ns_cbranch_scc1 LH_p3\nv_mov_b32 v{X0}, 0")
    A(f"v_mov_b32 v{X1}, s{S_NON}\ns_mov_b32 s{S_T0}, {EP_OFF}\ns_mov_b64 exec, 1\nbuffer_store_dword v{X1}, v{X0}, s[{SWS}:{SWS+3}], s{S_T0} offen sc1\ns_mov_b64 exec, -1")
    A("LH_fin:")
    tr_store(A, "LTRH")
    A("L_end:\ns_endpgm")
    A(f"L_ovf:\ns_mov_b32 s{S_T0}, 1\ns_atomic_add s{S_T0}, s[60:61], 0x10 glc")
    make_srd(A, 8, 60, 61, None, 256)
    A(f"v_lshlrev_b32 v4, 5, v1\ns_waitcnt lgkmcnt(0)\nL_ovf1:\nbuffer_load_dword v3, v4, s[8:11], 0 offen sc1\ns_waitcnt vmcnt(0)\ns_mov_b32 s{S_T3}, 0")
    for x in range(8): A(f"v_readlane_b32 s{12+x}, v3, {x}\ns_nop 3\ns_add_u32 s{S_T3}, s{S_T3}, s{12+x}")
    A(f"s_cmp_lg_u32 s{S_T3}, 256\ns_cbranch_scc1 L_ovf1")
    for x in range(8):
        A(f"s_min_u32 s{S_T1}, s{12+x}, 32\ns_sub_u32 s{S_T3}, 32, s{S_T1}\ns_mov_b32 s{S_T2}, {x}\ns_add_u32 s{S_T1}, s{S_T1}, s{S_T0}")
        A(f"s_cmp_lt_u32 s{S_T0}, s{S_T3}\ns_cbranch_scc1 L_idok\ns_sub_u32 s{S_T0}, s{S_T0}, s{S_T3}")
    A("s_endpgm")

def build():
    A1 = Asm(); vm = gen_prologue(A1); gen_A(A1, vm); gen_H(A1, vm)
    t = header(["; @launch grid=(256,1,1) block=(512,1,1) lds=163840"])
    t += kstart(KN) + A1.finish() + RODATA + kdesc(KN)
    return t

if __name__ == "__main__":
    OPT.update(kv="5:K0,6:V0+K1,7:V1", hkv="K2+V2")
    for a in sys.argv[2:]:
        k, v = a.split("=")
        try: OPT[k] = int(v)
        except ValueError: OPT[k] = v
    open(sys.argv[1], "w").write(build())
```

```python
import sys, math, struct
from asmlib import *
from gen1 import f2u, make_srd, interleave, C_SCALE

OPT = {}
STF = ['', ' nt', ' sc1', ' sc0 sc1', ' sc1 nt', ' sc0 sc1 nt', ' sc0']
MB = 1024 * 1024
STAMP_OFF = 36 * MB
PART_OFF, FO_OFF, FP_OFF, EP_OFF = 16 * MB, 32 * MB, 32 * MB + 32768, 32 * MB + 65536
DBIAS = 7.0
U = 16384
KU = [i * U for i in range(5)]
VU = [(5 + i) * U for i in range(5)]
NR = 3
WOFFS = [U, 2 * U, 0]
XUN = [KU[4], VU[4], VU[0]]
UA = (KU[4], VU[4]); UC = (KU[3], VU[3]); UD = (KU[29 % NR], KU[30 % NR]); O1U = (VU[30 % NR], KU[31 % NR])
MF = "v_mfma_f32_16x16x32_bf16"

S_WAVE, S_W4, S_WOFF, S_ROLE, S_NON = 3, 4, 5, 6, 7
SK, SV, SX, SWQ, SWS, SWO = 8, 12, 16, 20, 24, 28
S_B, S_H0, S_HG, S_FAST = 32, 33, 34, 35
S_T0, S_T1, S_T2, S_T3 = 36, 37, 38, 39
S_KB0, S_KB1, S_XB, S_WQB, S_WM, S_XM = 40, 41, 42, 43, 44, 45
S_IT, S_KIDX, S_VIDX, S_D, S_ITEM = 46, 47, 64, 65, 66
S_C, S_MU, S_ONE, S_KH, S_RET = 68, 69, 70, 71, 72
SOUT = 76
S_HK = 80

def kvf(kind): return STF[OPT.get('kf' if kind == 'K' else 'vf', 1)]
def r4(a): return f"v[{a}:{a+3}]"
def r2(a): return f"v[{a}:{a+1}]"
def cost(i):
    return sum(8 if x.startswith("v_exp") else 4 for x in i.split("\n"))
def sched(A, mf, reads, valu, rgap=1, pre=()):
    reads = list(reads); valu = list(valu)
    tot = sum(map(cost, reads)) + sum(map(cost, valu))
    n = len(mf); used = 0
    for x in pre: A(x)
    for i, m in enumerate(mf):
        A(m)
        target = tot * (i + 1) / n
        k = 0
        while True:
            if reads and k < rgap and (k == 0 or used + 4 <= target + 4):
                x = reads.pop(0); k += 1
            elif valu and (used + cost(valu[0]) / 2 <= target or i == n - 1):
                x = valu.pop(0)
            elif reads and i == n - 1:
                x = reads.pop(0)
            else: break
            A(x); used += cost(x)
    assert not reads and not valu

TRV = 23
def tr(A, lane, level=1):
    if OPT.get("trace", 0) >= level: A(f"s_memrealtime s[94:95]\ns_waitcnt lgkmcnt(0)\nv_writelane_b32 v{TRV}, s94, {lane}")
def tr_store(A, lab):
    if not OPT.get("trace"): return
    A(f"s_lshl_b32 s90, s2, 8\ns_add_u32 s90, s90, {STAMP_OFF + 131072}\nv_lshlrev_b32 v2, 2, v1")
    A(f"s_cmp_lg_u32 s{S_W4}, 0\ns_cbranch_scc1 {lab}\nbuffer_store_dword v{TRV}, v2, s[{SWS}:{SWS+3}], s90 offen\n{lab}:")

L = 1
KA, VA, L0, LH = 2, 6, 14, 24
T, T2, T3, T4, OST = 16, 17, 18, 19, 20
Q, O, S0, S1, P0, P1, FA, FB, NM = 32, 64, 128, 144, 160, 168, 176, 208, 240
KD, VD, WD, XD, WOD, KH = 160, 164, 166, 168, 170, 172
XA0, XA1, WA = 26, 28, 240
TRB = 248

class VM:
    def __init__(self, A): self.A = A; self.out = []
    def issued(self, tag, n=1): self.out.extend([tag] * n)
    def wait(self, *tags):
        last = max((i for i, t in enumerate(self.out) if t in tags), default=None)
        if last is None: return
        n = len(self.out) - 1 - last
        assert n <= 63
        self.A(f"s_waitcnt vmcnt({n})")
        del self.out[:last + 1]

def gen_prologue(A):
    cf = STF[OPT.get("cf", 1)]
    A(f"s_cmp_ge_u32 s2, 256\ns_cbranch_scc1 L_end")
    if OPT.get("trace"): A("s_memrealtime s[92:93]")
    A("s_load_dwordx16 s[48:63], s[0:1], 0")
    A("v_and_b32 v1, 63, v0\nv_lshrrev_b32 v2, 6, v0")
    A(f"v_readfirstlane_b32 s{S_WAVE}, v2")
    A(f"s_cmp_lg_u32 s{S_WAVE}, 0\ns_cbranch_scc1 L_idw")
    A(f"s_getreg_b32 s{S_T2}, hwreg(HW_REG_XCC_ID, 0, 3)")
    if OPT.get("fakex"): A(f"s_and_b32 s{S_T2}, s{S_T2}, {OPT['fakex']}")
    A(f"s_lshl_b32 s{S_T3}, s{S_T2}, 5\nv_mov_b32 v3, 1\nv_mov_b32 v4, 0\ns_waitcnt lgkmcnt(0)")
    make_srd(A, 8, 60, 61, None, 256)
    A(f"s_mov_b64 exec, 1\nbuffer_atomic_add v3, v4, s[8:11], s{S_T3} offen sc0 sc1\ns_mov_b64 exec, -1\ns_waitcnt vmcnt(0)\nv_readfirstlane_b32 s{S_T1}, v3")
    A(f"s_cmp_ge_u32 s{S_T1}, 32\ns_cbranch_scc1 L_ovf\nL_idok:")
    A(f"s_lshl_b32 s{S_T1}, s{S_T1}, 3\ns_or_b32 s{S_T1}, s{S_T1}, s{S_T2}\nv_mov_b32 v3, s{S_T1}\nv_mov_b32 v4, 0\nds_write_b32 v4, v3")
    A("L_idw:")
    A(f"v_lshrrev_b32 v{T}, 4, v{L}\nv_and_b32 v{T2}, 15, v{L}")
    A(f"v_lshlrev_b32 v{T3}, 1, v{T}\nv_xor_b32 v{T3}, v{T3}, v{T2}\nv_lshlrev_b32 v{T3}, 4, v{T3}")
    A(f"v_lshl_add_u32 v{WD}, v{T}, 13, v{T3}\nv_xor_b32 v{WD+1}, 128, v{WD}")
    A(f"v_lshl_add_u32 v{VD}, v{T}, 8, v{T3}\nv_xor_b32 v{VD+1}, 128, v{VD}\nv_lshl_add_u32 v{WOD}, v{T}, 10, v{T3}\nv_xor_b32 v{WOD+1}, 128, v{WOD}")
    A(f"v_lshrrev_b32 v{T4}, 3, v{L}\nv_and_b32 v{XD}, 7, v{L}\nv_lshrrev_b32 v{T3}, 1, v{T4}\nv_xor_b32 v{T3}, v{T3}, v{XD}")
    A(f"v_lshlrev_b32 v{T3}, 4, v{T3}\nv_lshl_add_u32 v{XD}, v{T4}, 10, v{T3}\nv_xor_b32 v{XD+1}, 64, v{XD}")
    A(f"s_and_b32 s{S_W4}, s{S_WAVE}, 3\ns_lshl_b32 s{S_WOFF}, s{S_W4}, 12\ns_lshr_b32 s{S_ROLE}, s{S_WAVE}, 2")
    A("s_waitcnt lgkmcnt(0)\ns_barrier\nv_mov_b32 v4, 0\nds_read_b32 v3, v4\ns_waitcnt lgkmcnt(0)\nv_readfirstlane_b32 s2, v3")
    A(f"s_bfe_u32 s{S_B}, s2, 0x10002\ns_lshl_b32 s{S_B}, s{S_B}, 3\ns_lshr_b32 s{S_T0}, s2, 5\ns_add_u32 s{S_B}, s{S_B}, s{S_T0}")
    A(f"s_and_b32 s{S_HG}, s2, 3\ns_lshl_b32 s{S_H0}, s{S_HG}, 3\ns_bfe_u32 s{S_T0}, s2, 0x20003\ns_lshl_b32 s{S_T0}, s{S_T0}, 1\ns_add_u32 s{S_H0}, s{S_H0}, s{S_T0}")
    A(f"s_add_u32 s{S_WQB}, s{S_H0}, s{S_ROLE}\ns_lshl_b32 s{S_WQB}, s{S_WQB}, 8\ns_lshl_b32 s{S_T0}, s{S_W4}, 17\ns_add_u32 s{S_WQB}, s{S_WQB}, s{S_T0}")
    A(f"s_lshl_b32 s{S_XB}, s{S_B}, 17\ns_lshl_b32 s{S_T0}, s{S_W4}, 15\ns_add_u32 s{S_XB}, s{S_XB}, s{S_T0}\ns_lshl_b32 s{S_T0}, s{S_ROLE}, 14\ns_add_u32 s{S_XB}, s{S_XB}, s{S_T0}")
    A(f"s_mul_i32 s{S_WM}, s{S_ROLE}, {VU[1]-KU[1]}\ns_add_u32 s{S_WM}, s{S_WM}, {KU[1]}\ns_add_u32 s{S_WM}, s{S_WM}, s{S_WOFF}")
    A(f"s_lshl_b32 s{S_XM}, s{S_ROLE}, 11\ns_add_u32 s{S_XM}, s{S_XM}, s{S_WOFF}")
    A(f"s_lshl_b32 s{S_T0}, s{S_B}, 5\ns_add_u32 s{S_T0}, s{S_T0}, s{S_H0}\ns_lshl_b32 s{S_KB0}, s{S_T0}, 18\ns_add_u32 s{S_KB0}, s{S_KB0}, s{S_WOFF}\ns_add_u32 s{S_KB1}, s{S_KB0}, 0x40000")
    A(f"s_lshl_b32 s{S_T0}, s{S_ROLE}, 11\ns_add_u32 s{S_KH}, s{S_KB0}, s{S_T0}")
    A("s_waitcnt lgkmcnt(0)")
    A(f"s_add_u32 s{S_T2}, s62, {EP_OFF}\ns_addc_u32 s{S_T3}, s63, 0\ns_load_dword s{S_NON}, s[{S_T2}:{S_T3}], 0")
    make_srd(A, SX, 48, 49, None, 2 * MB)
    make_srd(A, SWQ, 54, 55, None, 4 * MB)
    if OPT.get("trace"): A(f"v_writelane_b32 v{TRV}, s92, 63")
    vm = VM(A)
    def touch(lab):
        A(f"s_lshr_b32 s{S_T0}, s2, 3\ns_cmp_ge_u32 s{S_T0}, 16\ns_cbranch_scc1 L_tx{lab} ; KEEPVM")
        A(f"v_lshrrev_b32 v{T2}, 4, v{L}\nv_and_b32 v{T}, 15, v{L}\nv_lshlrev_b32 v{T}, 7, v{T}\nv_lshl_add_u32 v{T}, v{T2}, 13, v{T}")
        A(f"s_lshl_b32 s{S_T0}, s{S_T0}, 15\ns_lshl_b32 s{S_T1}, s{S_WAVE}, 19\ns_add_u32 s{S_T0}, s{S_T0}, s{S_T1}")
        A(f"s_lshl_b32 s{S_T1}, s{S_HG}, 11\ns_add_u32 s{S_T0}, s{S_T0}, s{S_T1}")
        A(f"buffer_load_dword v{T3}, v{T}, s[{SWQ}:{SWQ+3}], s{S_T0} offen{cf} ; NOTRACK\ns_branch L_td{lab} ; KEEPVM")
        A(f"L_tx{lab}: ; KEEPVM\nv_lshlrev_b32 v{T}, 10, v{L}\ns_sub_u32 s{S_T0}, s{S_T0}, 16\ns_lshl_b32 s{S_T0}, s{S_T0}, 16\ns_lshl_b32 s{S_T1}, s{S_WAVE}, 7\ns_add_u32 s{S_T0}, s{S_T0}, s{S_T1}")
        A(f"s_bfe_u32 s{S_T1}, s2, 0x10002\ns_lshl_b32 s{S_T1}, s{S_T1}, 20\ns_add_u32 s{S_T0}, s{S_T0}, s{S_T1}")
        A(f"buffer_load_dword v{T3}, v{T}, s[{SX}:{SX+3}], s{S_T0} offen{cf} ; NOTRACK\nL_td{lab}: ; KEEPVM")
    def touch_if(lo, hi, lab):
        if not OPT.get("touch", 1) or lo >= hi: return
        A(f"s_cmp_lt_u32 s{S_WAVE}, {lo}\ns_cbranch_scc1 L_ts{lab} ; KEEPVM\ns_cmp_ge_u32 s{S_WAVE}, {hi}\ns_cbranch_scc1 L_ts{lab} ; KEEPVM")
        touch(lab)
        A(f"L_ts{lab}: ; KEEPVM")
    def chunk_dmas(c):
        be = WOFFS[c % 3]
        r = []
        for j in range(4):
            r.append(f"s_add_u32 m0, s{S_WM}, {be + j*1024}\ns_add_u32 s{S_T1}, s{S_WQB}, {(64*c + 4*j)*8192}\nbuffer_load_dwordx4 v{WD + (j >> 1)}, s[{SWQ}:{SWQ+3}], s{S_T1} offen{cf} lds")
        for j in range(2):
            r.append(f"s_add_u32 m0, s{S_XM}, {XUN[c % 3] + j*1024}\ns_add_u32 s{S_T1}, s{S_XB}, {j*8192 + c*128}\nbuffer_load_dwordx4 v{XD + j}, s[{SX}:{SX+3}], s{S_T1} offen{cf} lds")
        return r
    def kv_half(item):
        kind, g = item[0], int(item[1])
        unit = (KU if kind == "K" else VU)[g % NR]
        srd = SK if kind == "K" else SV
        return [f"s_add_u32 s{S_T2}, s{S_KH}, {g*U}\ns_add_u32 m0, s{S_XM}, {unit}\nbuffer_load_dwordx4 v{(KH if kind == 'K' else VD) + p}, s[{srd}:{srd+3}], s{S_T2} offen offset:{p*1024}{kvf(kind)} lds" for p in range(2)]
    t1, t2 = OPT.get("t1", 2), OPT.get("t2", 4)
    touch_if(0, t1, "a")
    for x in chunk_dmas(0): A(x)
    vm.issued("C0", 6)
    touch_if(t1, t2, "b")
    make_srd(A, SK, 50, 51, None, 128 * MB)
    make_srd(A, SV, 52, 53, None, 128 * MB)
    for x in chunk_dmas(1): A(x)
    vm.issued("C1", 6)
    touch_if(t2, 8, "c")
    A(f"v_lshrrev_b32 v{T}, 4, v{L}\nv_and_b32 v{T2}, 15, v{L}")
    for j in range(4):
        A(f"v_add_u32 v{T4}, {4*j}, v{T}\nv_xor_b32 v{T4}, v{T4}, v{T2}\nv_lshlrev_b32 v{T4}, 4, v{T4}\nv_lshl_add_u32 v{KD+j}, v{T}, 8, v{T4}")
    A(f"s_cmp_eq_u32 s{S_ROLE}, 0\ns_cselect_b64 vcc, -1, 0")
    A(f"v_cndmask_b32 v{KH}, v{KD+2}, v{KD}, vcc\nv_cndmask_b32 v{KH+1}, v{KD+3}, v{KD+1}, vcc")
    make_srd(A, SWS, 62, 63, None, 40 * MB)
    make_srd(A, SOUT, 58, 59, None, 2 * MB)
    make_srd(A, SWO, 56, 57, None, 4 * MB)
    A(f"s_mov_b32 s{S_C}, {hex(f2u(C_SCALE))}\ns_mov_b32 s{S_MU}, {hex(-(NR-1)*U & 0xffffffff)}\ns_mov_b32 s{S_ONE}, 0x3f803f80")
    A(f"v_xor_b32 v{T4}, v{T}, v{T2}\nv_lshlrev_b32 v{T4}, 4, v{T4}\nv_lshl_add_u32 v{T4}, v{T2}, 8, v{T4}")
    for s in range(4): A(f"v_xor_b32 v{KA+s}, {64*s}, v{T4}")
    A(f"v_lshrrev_b32 v{T4}, 1, v{T2}\nv_xor_b32 v{T4}, v{T4}, v{T}\nv_lshlrev_b32 v{T4}, 4, v{T4}\nv_lshl_add_u32 v{T4}, v{T2}, 7, v{T4}")
    A(f"v_add_u32 v{T4}, s{S_WOFF}, v{T4}\nv_add_u32 v{XA0}, {KU[4]}, v{T4}\nv_xor_b32 v{XA0+1}, 64, v{XA0}")
    for s in range(2): A(f"v_add_u32 v{XA1+s}, {VU[4]-KU[4]}, v{XA0+s}")
    A(f"v_bfe_u32 v{T2}, v{L}, 2, 3\nv_and_b32 v{T4}, 3, v{L}\nv_lshlrev_b32 v{T4}, 3, v{T4}\nv_lshl_add_u32 v{T4}, v{T2}, 5, v{T4}")
    A(f"v_bfe_u32 v{T2}, v{L}, 2, 2\nv_lshl_add_u32 v{T4}, v{T2}, 8, v{T4}")
    A(f"v_lshl_add_u32 v{TRB}, v{T}, 10, v{T4}")
    A(f"v_lshl_add_u32 v{T4}, v{T}, 11, v{T4}\ns_sub_u32 s{S_T0}, s{S_WM}, s{S_WOFF}\nv_add_u32 v{T4}, s{S_T0}, v{T4}")
    A(f"v_add_u32 v{T2}, {VU[0]}, v{TRB}")
    for db in range(8): A(f"v_xor_b32 v{WA+db}, {32*db}, v{T4}\nv_xor_b32 v{VA+db}, {32*db}, v{T2}")
    A(f"v_lshlrev_b32 v{OST}, 4, v{L}")
    A(f"s_mov_b32 s{S_KIDX}, 0\ns_mov_b32 s{S_VIDX}, 0\ns_mov_b32 s{S_ITEM}, 0")
    A(f"s_waitcnt lgkmcnt(0)\ns_add_u32 s{S_NON}, s{S_NON}, 1")
    kvsched = {int(k): v for k, v in (x.split(":") for x in OPT["kv"].split(","))}
    XF = S0
    for r in range(64): A(f"v_mov_b32 v{O+r}, 0")
    def reads(i):
        c, s = i // 4, i % 4
        ks, dh = s // 2, s % 2
        XA, xo = (XA1, 0) if c % 3 == 1 else (XA0, XUN[c % 3] - KU[4])
        rd = []
        if dh == 0: rd += [f"ds_read_b128 {r4(XF+(ks*2+u)*4)}, v{XA+ks} offset:{xo + u*2048}" for u in range(2)]
        for b in range(4):
            d = FA + (s * 4 + b) * 4
            for x in range(2):
                rd.append(f"ds_read_b64_tr_b16 {r2(d+2*x)}, v{WA+dh*4+b} offset:{WOFFS[c % 3] + ks*8192 + x*1024}")
        return rd
    def mfs(i):
        s = i % 4
        ks, dh = s // 2, s % 2
        return [f"{MF} {r4(O+((dh*4+b)*2+u)*4)}, {r4(FA+(s*4+b)*4)}, {r4(XF+(ks*2+u)*4)}, {r4(O+((dh*4+b)*2+u)*4)}" for b in range(4) for u in range(2)]
    vm.wait("C0")
    A("s_barrier")
    tr(A, 40, 2)
    for r in reads(0) + reads(1): A(r)
    pend = chunk_dmas(2); vm.issued("C2", 6)
    for i in range(32):
        c, s = i // 4, i % 4
        m = mfs(i)
        if not (s == 3 and c < 7): A(f"s_waitcnt lgkmcnt({len(reads(i+1)) if i < 31 else 0})")
        if s == 2 and c < 7:
            A(m[0]); A(m[1]); m = m[2:]
            vm.wait(f"C{c+1}")
            A("s_waitcnt lgkmcnt(0)\ns_barrier")
            tr(A, 41 + c, 2)
            if c == OPT.get("prio", 6): A(f"s_cmp_ge_u32 s{S_WAVE}, 4\ns_cbranch_scc1 L_np\ns_setprio 2\nL_np: ; KEEPLG KEEPVM")
            if c + 3 < 8: pend += chunk_dmas(c + 3); vm.issued(f"C{c+3}", 6)
            for item in (kvsched[c + 1].split("+") if (c + 1) in kvsched else []):
                pend += kv_half(item); vm.issued(item, 2)
        fill = reads(i + 2) if i + 2 < 32 else []
        take = pend[:OPT.get("dper", 3)] if s != 1 else pend
        pend = pend[len(take):]
        k = len(m)
        per = [[] for _ in range(k)]
        for n_, x in enumerate(take): per[(2 * n_) % k].append(x)
        for n_, x in enumerate(fill): per[n_ * k // max(len(fill), 1)].append(x)
        for mm, fl in zip(m, per):
            A(mm)
            for x in fl: A(x)
    assert not pend
    A(f"s_cmp_ge_u32 s{S_WAVE}, 4\ns_cbranch_scc1 L_H")
    return vm

def swaps(A, x, y):
    for i in range(2): A(f"v_permlane32_swap_b32 v{x+i}, v{y+i}")
    for i in range(2): A(f"v_permlane16_swap_b32 v{x+i}, v{y+i}")
def q_convert(A):
    for s in range(4):
        for u in range(2):
            q = Q + (s * 2 + u) * 4
            for t in range(2):
                a = O + ((2 * s + t) * 2 + u) * 4
                for r in range(4): A(f"v_mul_f32 v{a+r}, s{S_C}, v{a+r}")
                A(f"v_cvt_pk_bf16_f32 v{q+2*t}, v{a}, v{a+1}\nv_cvt_pk_bf16_f32 v{q+2*t+1}, v{a+2}, v{a+3}")
        if s:
            for u in range(2): swaps(A, Q + ((s-1) * 2 + u) * 4, Q + ((s-1) * 2 + u) * 4 + 2)
    for u in range(2): swaps(A, Q + (6 + u) * 4, Q + (6 + u) * 4 + 2)

def slot_addr(A, dst, ua, ub):
    A(f"s_xor_b32 s{S_T1}, s{S_W4}, s{S_HG}\ns_and_b32 s{S_T0}, s{S_T1}, 1\ns_lshl_b32 s{S_T0}, s{S_T0}, 13\ns_lshr_b32 s{S_T1}, s{S_T1}, 1\ns_mul_i32 s{S_T1}, s{S_T1}, {(ub-ua) & 0xffffffff}")
    A(f"s_add_u32 s{S_T0}, s{S_T0}, s{S_T1}\ns_add_u32 s{S_T0}, s{S_T0}, {ua}\nv_add_u32 v{dst}, s{S_T0}, v{OST}")
def xw_value(A, s):
    A(f"s_getreg_b32 s{S_T0}, hwreg(HW_REG_XCC_ID, 0, 4)\ns_lshl_b32 s{s}, s{S_NON}, 4\ns_or_b32 s{s}, s{s}, s{S_T0}")
def mode_load(A, dst, PA):
    A(f"s_mov_b64 exec, 0x111\nbuffer_load_dword v{dst}, v{PA}, s[{SWS}:{SWS+3}], 0 offen offset:32 sc1 ; NOTRACK\ns_mov_b64 exec, -1")
def mode_eval(A, src):
    xw_value(A, S_T1)
    A(f"s_mov_b64 exec, 0x111\nv_cmp_ne_u32 vcc, s{S_T1}, v{src}\ns_mov_b64 exec, -1\ns_cmp_eq_u64 vcc, 0\ns_cselect_b32 s{S_FAST}, 1, 0")
    if OPT.get("slow"): A(f"s_mov_b32 s{S_FAST}, 0")
def pub_stores(A, F, item, lab, pre=None):
    A(f"s_lshl_b32 s{S_T0}, s{S_B}, 5\ns_add_u32 s{S_T0}, s{S_T0}, s{S_H0}\ns_add_u32 s{S_T0}, s{S_T0}, {item}\ns_lshl_b32 s{S_T0}, s{S_T0}, 2\ns_add_u32 s{S_T0}, s{S_T0}, s{S_W4}\ns_lshl_b32 s{S_T0}, s{S_T0}, 13\ns_add_u32 s{S_T1}, s{S_T0}, 4096")
    A(f"s_cmp_eq_u32 s{S_FAST}, 0\ns_cbranch_scc1 {lab}_s")
    for fl, end in (("", f"s_branch {lab}_e"), (" sc1", "")):
        if fl: A(f"{lab}_s:")
        for s in range(8):
            r = F[s] if isinstance(F, list) else F + 4 * s
            for x in (pre or {}).get(s, []): A(x)
            A(f"buffer_store_dwordx4 {r4(r)}, v{OST}, s[{SWS}:{SWS+3}], s{S_T0 if s < 4 else S_T1} offen offset:{(s%4)*1024}{fl}")
        if end: A(end)
    A(f"{lab}_e:")
def pub_flag(A, item, lab, tmp):
    A(f"s_lshl_b32 s{S_T2}, s2, 7\ns_lshl_b32 s{S_T3}, s{S_W4}, 2\ns_add_u32 s{S_T2}, s{S_T2}, s{S_T3}\ns_add_u32 s{S_T2}, s{S_T2}, {FO_OFF + item * 16}")
    A(f"v_mov_b32 v{tmp}, s{S_NON}\nv_mov_b32 v{tmp+1}, 0\ns_mov_b64 exec, 1")
    A(f"s_cmp_eq_u32 s{S_FAST}, 0\ns_cbranch_scc1 {lab}_s")
    A(f"buffer_store_dword v{tmp}, v{tmp+1}, s[{SWS}:{SWS+3}], s{S_T2} offen\ns_branch {lab}_e")
    A(f"{lab}_s:\nbuffer_store_dword v{tmp}, v{tmp+1}, s[{SWS}:{SWS+3}], s{S_T2} offen sc1\n{lab}_e:\ns_mov_b64 exec, -1")
def peer_setup(A, PA):
    A(f"s_bfe_u32 s{S_T2}, s2, 0x20003\ns_xor_b32 s{S_T3}, s{S_W4}, s{S_HG}")
    for d in range(1, 4):
        A(f"s_add_u32 s{S_T0}, s{S_T2}, {d}\ns_and_b32 s{S_T0}, s{S_T0}, 3\ns_lshl_b32 s{S_T0}, s{S_T0}, 1\ns_lshl_b32 s{S_T1}, s{S_HG}, 3\ns_add_u32 s{S_T0}, s{S_T0}, s{S_T1}")
        A(f"s_lshl_b32 s{S_T1}, s{S_B}, 5\ns_add_u32 s{S_T1}, s{S_T1}, s{S_T0}\ns_lshl_b32 s{S_T1}, s{S_T1}, 2\ns_add_u32 s{S_T1}, s{S_T1}, s{S_T3}\ns_lshl_b32 s{83+d}, s{S_T1}, 13")
    A(f"v_lshrrev_b32 v{T}, 2, v{L}\nv_add_u32 v{T}, s{S_T2}, v{T}\nv_add_u32 v{T}, 1, v{T}\nv_and_b32 v{T}, 3, v{T}\nv_lshlrev_b32 v{T}, 10, v{T}")
    A(f"s_and_b32 s{S_T0}, s2, 0xe7\ns_lshl_b32 s{S_T0}, s{S_T0}, 7\ns_add_u32 s{S_T0}, s{S_T0}, {FO_OFF}\nv_and_b32 v{PA}, 3, v{L}\nv_lshl_add_u32 v{PA}, v{PA}, 2, v{T}\nv_add_u32 v{PA}, s{S_T0}, v{PA}")
def poll_loop(A, lab, mask, off, PV_, PA):
    A(f"{lab}:\ns_mov_b64 exec, {hex(mask)}")
    A(f"buffer_load_dword v{PV_}, v{PA}, s[{SWS}:{SWS+3}], 0 offen offset:{off} sc1\ns_waitcnt vmcnt(0)")
    A(f"v_cmp_ne_u32 vcc, s{S_NON}, v{PV_}\ns_mov_b64 exec, -1\ns_cbranch_vccnz {lab}")
def dma_peer(A, d, o, ua, ub):
    A(f"s_and_b32 s{S_T0}, s{S_W4}, 1\ns_lshl_b32 s{S_T0}, s{S_T0}, 13\ns_lshr_b32 s{S_T1}, s{S_W4}, 1\ns_mul_i32 s{S_T1}, s{S_T1}, {(ub-ua) & 0xffffffff}\ns_add_u32 s{S_T0}, s{S_T0}, s{S_T1}")
    A(f"s_add_u32 m0, s{S_T0}, {ua}\ns_add_u32 s{S_T1}, s{83+d}, {o*32768}")
    for j in range(8):
        if j == 4: A(f"s_add_u32 m0, m0, 4096\ns_add_u32 s{S_T1}, s{S_T1}, 4096")
        A(f"buffer_load_dwordx4 v{OST}, s[{SWS}:{SWS+3}], s{S_T1} offen offset:{(j%4)*1024} sc1 lds")

def gen_A(A, vm0):
    vma = VM(A); vma.out = list(vm0.out)
    PVA, PAA, MDA = 26, 28, 27
    q_convert(A)
    vma.wait("K0")
    A("s_waitcnt lgkmcnt(0)\ns_barrier")
    def kread(F, half): return [f"ds_read_b128 {r4(F+(s*2+j)*4)}, v{KA+s} offset:{half*8192 + j*4096}" for s in range(4) for j in range(2)]
    def vread(F, half): return [f"ds_read_b64_tr_b16 {r2(F+db*4+2*x)}, v{VA+db} offset:{half*8192 + x*4096}" for db in range(8) for x in range(2)]
    def qk(F, S, first):
        r = []
        for s in range(4):
            for j in range(2):
                for u in range(2):
                    d = S + (j * 2 + u) * 4
                    c = r4(d) if s else ("0" if first else r4(NM + 4 * u))
                    r.append(f"{MF} {r4(d)}, {r4(F+(s*2+j)*4)}, {r4(Q+(s*2+u)*4)}, {c}")
        return r
    def pv(F, P): return [f"{MF} {r4(O+(db*2+u)*4)}, {r4(F+db*4)}, {r4(P+4*u)}, {r4(O+(db*2+u)*4)}" for db in range(8) for u in range(2)]
    E = [T, T2, T3, T4]
    CMP = [f"v_add_f32 v{T}, v{LH}, v{LH+1}", f"v_cmp_nge_f32 vcc, 1.0, v{T}"]
    if OPT.get("norare"): CMP = [f"v_cmp_lt_f32 vcc, v{L}, v{L}"]
    MRG = [f"v_add_f32 v{L0+u}, v{L0+u}, v{LH+u}" for u in range(2)]
    def sexp(S, P, part):
        def src(n): return S + (part * 2 + (n >> 1)) * 4 + 2 * (n & 1)
        def dst(n): return P + 4 * (n >> 1) + 2 * part + (n & 1)
        def fin(n): return [f"v_cvt_pk_bf16_f32 v{dst(n)}, v{E[(2*n)%4]}, v{E[(2*n+1)%4]}"]
        def dt(n):
            u = n >> 1
            return [f"v_dot2_f32_bf16 v{LH+u}, v{dst(n)}, s{S_ONE}, " + ("0" if (part == 0 and n % 2 == 0) else f"v{LH+u}")]
        r = []
        for n in range(4):
            r += [f"v_exp_f32 v{E[(2*n)%4]}, v{src(n)}", f"v_exp_f32 v{E[(2*n+1)%4]}, v{src(n)+1}"]
            if n > 0: r += fin(n - 1)
            if n > 1: r += dt(n - 2)
        return r + fin(3) + dt(2) + dt(3)
    def adv(idx, regs, n):
        return ([f"s_cmp_eq_u32 s{idx}, {(NR-1)*U}\ns_cselect_b32 s{S_D}, s{S_MU}, {U}\ns_add_u32 s{idx}, s{idx}, s{S_D}"] +
                [f"v_add_u32 v{regs+i}, s{S_D}, v{regs+i}" for i in range(n)])
    def allred(r, tmp, op):
        for sw in ("32", "16"):
            A(f"v_mov_b32 v{tmp}, v{r}\nv_permlane{sw}_swap_b32 v{r}, v{tmp}\n{op} v{r}, v{r}, v{tmp}")
    def xmax(S):
        for u, t in ((0, T), (1, T2)):
            a, b = S + 4 * u, S + 8 + 4 * u
            A(f"v_max3_f32 v{t}, v{a}, v{a+1}, v{a+2}\nv_max3_f32 v{t}, v{t}, v{a+3}, v{b}\nv_max3_f32 v{t}, v{t}, v{b+1}, v{b+2}\nv_max_f32 v{t}, v{t}, v{b+3}")
            allred(t, T3, "v_max_f32")
            A(f"v_ceil_f32 v{t}, v{t}\nv_add_f32 v{t}, {hex(f2u(DBIAS))}, v{t}")
    def ssub(S): return [f"v_sub_f32 v{S+i}, v{S+i}, v{T if (i >> 2) % 2 == 0 else T2}" for i in range(16)]
    def rare(S, P, SO):
        xmax(S)
        for t, k in ((T, T3), (T2, T4)):
            A(f"v_max_f32 v{t}, 0, v{t}\nv_cvt_i32_f32 v{k}, v{t}\nv_sub_u32 v{k}, 0, v{k}")
        for i in range(8): A(f"v_sub_f32 v{NM+i}, v{NM+i}, v{T if i < 4 else T2}")
        for x in ssub(S) + ssub(SO): A(x)
        A(f"v_ldexp_f32 v{L0}, v{L0}, v{T3}\nv_ldexp_f32 v{L0+1}, v{L0+1}, v{T4}")
        for i in range(64): A(f"v_ldexp_f32 v{O+i}, v{O+i}, v{T3 if (i >> 2) % 2 == 0 else T4}")
        for x in sexp(S, P, 0) + sexp(S, P, 1): A(x)
    A("LA_item:")
    for r in kread(FA, 0) + kread(FB, 1): A(r)
    zo = [f"v_mov_b32 v{O+r}, 0" for r in range(64)] + [f"v_mov_b32 v{L0}, 0", f"v_mov_b32 v{L0+1}, 0"]
    for z in zo[:30]: A(z)
    interleave(A, qk(FA, S0, True), zo[30:])
    for r in adv(S_KIDX, KA, 4): A(r)
    xmax(S0)
    for i in range(8): A(f"v_sub_f32 v{NM+i}, 0, v{T if i < 4 else T2}")
    for x in ssub(S0): A(x)
    interleave(A, qk(FB, S1, False), sexp(S0, P0, 0) + sexp(S0, P0, 1))
    A("s_waitcnt vmcnt(0) lgkmcnt(0)\ns_barrier")
    for r in kread(FA, 0): A(r)
    A(f"s_or_b32 s{S_T0}, s{S_W4}, s{S_ITEM}\ns_cmp_lg_u32 s{S_T0}, 0\ns_cbranch_scc1 LA_nocnt ; KEEPLG")
    xw_value(A, S_T1)
    A(f"v_mov_b32 v26, s{S_T1}\nv_mov_b32 v27, 0\ns_lshl_b32 s{S_T0}, s2, 7\ns_add_u32 s{S_T0}, s{S_T0}, {FO_OFF}\ns_mov_b64 exec, 1")
    A(f"buffer_store_dword v26, v27, s[{SWS}:{SWS+3}], s{S_T0} offen offset:32 sc1\ns_mov_b64 exec, -1")
    A("LA_nocnt: ; KEEPLG")
    A(f"s_mov_b32 s{S_IT}, 0")
    A("LA_loop: ; KEEPLG")
    W0 = ["s_waitcnt lgkmcnt(0)"]
    if OPT.get("nocomp"):
        A(f"s_waitcnt lgkmcnt(0)\ns_barrier\ns_add_u32 s{S_IT}, s{S_IT}, 1\ns_branch LA_back0")
    ak = adv(S_KIDX, KA, 4); av = adv(S_VIDX, VA, 8)
    sched(A, qk(FA, S0, False), vread(FB, 0), MRG + sexp(S1, P1, 0), rgap=2, pre=W0)
    sched(A, pv(FB, P0), kread(FA, 1), sexp(S1, P1, 1) + ak + CMP, pre=W0)
    A("s_cbranch_vccnz LA_rare1 ; KEEPLG")
    A("LA_back1: ; KEEPLG")
    sched(A, qk(FA, S1, False), vread(FB, 1), MRG + sexp(S0, P0, 0), rgap=2, pre=W0)
    p1 = pv(FB, P1)
    e4 = sexp(S0, P0, 1)
    A("s_waitcnt lgkmcnt(0)")
    interleave(A, p1[:4], e4[:3] + av[:3])
    A("s_barrier")
    sched(A, p1[4:], kread(FA, 0), e4[3:] + av[3:] + [f"s_add_u32 s{S_IT}, s{S_IT}, 1"] + CMP)
    A("s_cbranch_vccnz LA_rare0 ; KEEPLG")
    A("LA_back0: ; KEEPLG")
    A(f"s_cmp_lt_u32 s{S_IT}, 15\ns_cbranch_scc1 LA_loop ; KEEPLG")
    A("s_waitcnt lgkmcnt(0)")
    for r in vread(FB, 0): A(r)
    e = MRG + sexp(S1, P1, 0) + sexp(S1, P1, 1)
    for x in e[:7]: A(x)
    sched(A, pv(FB, P0), vread(FA, 1), e[7:] + CMP, rgap=2)
    A("s_cbranch_vccnz LA_rare2 ; KEEPLG")
    A("LA_back2: ; KEEPLG")
    for x in MRG: A(x)
    for m in pv(FA, P1)[:8]: A(m)
    for u in range(2):
        allred(L0 + u, T, "v_add_f32")
        A(f"v_rcp_f32 v{L0+u}, v{L0+u}")
    interleave(A, pv(FA, P1)[8:], av)
    for e_ in range(4):
        for u in range(2):
            for t in range(2):
                a = O + ((2 * e_ + t) * 2 + u) * 4
                for r in range(4): A(f"v_mul_f32 v{a+r}, v{a+r}, v{L0+u}")
                d = FB + (e_ * 2 + u) * 4 + 2 * t
                A(f"v_cvt_pk_bf16_f32 v{d}, v{a}, v{a+1}\nv_cvt_pk_bf16_f32 v{d+1}, v{a+2}, v{a+3}")
    A(f"s_cmp_lg_u32 s{S_ITEM}, 0\ns_cbranch_scc1 LA_done")
    A(f"s_mov_b32 s{S_ITEM}, 1")
    slot_addr(A, T, *UA)
    for s in range(8): A(f"ds_read_b128 {r4(Q+4*s)}, v{T} offset:{s*1024}")
    A("s_waitcnt lgkmcnt(0)")
    for s in range(8): A(f"ds_write_b128 v{T}, {r4(FB+4*s)} offset:{s*1024}")
    peer_setup(A, PAA)
    mode_load(A, MDA, PAA)
    A("s_waitcnt lgkmcnt(0)\ns_branch LA_item")
    A("LA_done:")
    slot_addr(A, T, *O1U)
    for s in range(8): A(f"ds_write_b128 v{T}, {r4(FB+4*s)} offset:{s*1024}")
    mode_eval(A, MDA)
    pub_stores(A, FB, 1, "LA_pub")
    A("s_waitcnt lgkmcnt(0)\ns_barrier")
    A("s_waitcnt vmcnt(0)")
    pub_flag(A, 1, "LA_fl", T)
    A("s_barrier")
    dma_peer(A, 2, 0, *UA); dma_peer(A, 3, 0, *UC)
    A("s_waitcnt vmcnt(0)\ns_barrier")
    poll_loop(A, "LA_q1", 0x0ff, 16, PVA, PAA)
    dma_peer(A, 1, 1, *O1U); dma_peer(A, 2, 1, *UD)
    poll_loop(A, "LA_q3", 0xf00, 16, PVA, PAA)
    A("s_barrier")
    dma_peer(A, 3, 1, *UA)
    A("s_waitcnt vmcnt(0)\ns_barrier")
    A("s_endpgm")
    A("LA_rare0:\ns_waitcnt lgkmcnt(0)")
    rare(S0, P0, S1)
    A("s_branch LA_back0")
    A(f"LA_rare1:\ns_waitcnt lgkmcnt(0)\ns_mov_b32 s{S_RET}, 0")
    A("LA_rare1b:")
    rare(S1, P1, S0)
    A(f"s_cmp_eq_u32 s{S_RET}, 0\ns_cbranch_scc1 LA_back1\ns_branch LA_back2")
    A(f"LA_rare2:\ns_waitcnt lgkmcnt(0)\ns_mov_b32 s{S_RET}, 1\ns_branch LA_rare1b")

def gen_H(A, vm):
    HKD, HVD, HWOD = 2, 6, 8
    OB3 = 10
    WT = 13
    WTR = [[13, 14, 15], [16, 17, 18]]
    PV_, PA, HT, HT2, MD = 19, 21, 22, 0, 22
    ACC, BP, OBUF = 24, 88, 232
    HKV = [(x[0], int(x[1])) for x in OPT.get("hkv", "").split("+") if x]
    A("L_H:")
    def seg(off): return 0 if off < 65536 - 8192 else (1 if off < 49152 + 65536 - 8192 else 2)
    regs = {"KD": KD, "VD": VD}
    def dma_kv(kind, g):
        if g >= 32: return
        base = S_KB0 if g < 16 else S_KB1
        unit = (KU if kind == "K" else VU)[g % NR]
        srd = SK if kind == "K" else SV
        A(f"s_add_u32 s{S_T0}, s{base}, {(g % 16) * U}\ns_add_u32 m0, s{S_WOFF}, {unit}")
        def four(fl):
            for j in range(4):
                A(f"buffer_load_dwordx4 v{regs['KD']+j if kind == 'K' else regs['VD']+(j&1)}, s[{srd}:{srd+3}], s{S_T0} offen offset:{j*1024}{fl} lds")
        sp = OPT.get("ksplit" if kind == "K" else "vsplit")
        if sp is None: four(kvf(kind))
        else:
            lo, hi = [int(x) for x in str(sp).split("-")]
            lab = f"LS{kind}{g}"
            A(f"s_sub_u32 s{S_T1}, s{S_B}, {lo}\ns_cmp_lt_u32 s{S_T1}, {hi-lo}\ns_cbranch_scc1 {lab}_d")
            four(" nt")
            A(f"s_branch {lab}_e\n{lab}_d: ; KEEPVM KEEPLG")
            four("")
            A(f"{lab}_e: ; KEEPVM KEEPLG")
        vm.issued(f"{kind}{g}", 4)
    def dma_blk(i, unit):
        slot = i // 2
        d, o = slot % 4, slot // 4
        koff = (o * 128 + (i % 2) * 64) * 1024
        for j in range(4):
            A(f"s_add_u32 m0, s{S_WOFF}, {unit + j*1024}\ns_add_u32 s{S_T1}, s{S_HK+d}, {koff + j*4096}")
            A(f"buffer_load_dwordx4 v{HWOD+(j&1)}, s[{SWO}:{SWO+3}], s{S_T1} offen{STF[OPT.get('wf', 1)]} lds")
        vm.issued(f"W{i}", 4)
    breg = {}
    def tr_blk(i, unit, pos):
        breg[i] = BP + pos * 16
        r = []
        for e_ in range(2):
            for t in range(2):
                for x in range(2):
                    off = unit + e_ * 8192 + x * 4096
                    sg = seg(off)
                    r.append(f"ds_read_b64_tr_b16 {r2(breg[i]+(e_*2+t)*4+2*x)}, v{WTR[t][sg]} offset:{off - sg*49152}")
        return r
    def compute(slot, ua, ub, extra=(), half=None):
        def rd(n):
            e_, qs = n // 8, n % 8
            qi, u = qs // 2, qs % 2
            off = (ua if qi < 2 else ub) + (qi % 2) * 8192 + (e_ * 2 + u) * 1024
            sg = seg(off)
            return f"ds_read_b128 {r4(OBUF+(n%6)*4)}, v{OB3+sg} offset:{off - sg*49152}"
        lo, hi = (0, 32) if half is None else (16 * half, 16 * half + 16)
        for n in range(lo, lo + 5): A(rd(n))
        for n in range(lo, hi):
            e_, qs = n // 8, n % 8
            for t in range(2):
                bf = breg[2 * slot + e_ // 2] + ((e_ % 2) * 2 + t) * 4
                a = ACC + (qs // 2) * 16 + (qs % 2) * 8 + t * 4
                A(f"{MF} {r4(a)}, {r4(bf)}, {r4(OBUF+(n%6)*4)}, " + ("0" if (slot == 0 and e_ == 0) else r4(a)))
            if n + 5 < hi: A(rd(n + 5))
        for x in extra: A(x)
    for k_, g_ in HKV: dma_kv(k_, g_)
    vm.wait("K0")
    A("s_waitcnt lgkmcnt(0)\ns_barrier")
    tr(A, 51, 2)
    ev = {g: [] for g in range(32)}
    SU = [KU[3], VU[3]]
    for i in range(9):
        gi = 1 + (i // 2) * 3 + (i % 2)
        ev[gi].append(("dma", i, SU[i % 2])); ev[gi + 2].append(("tr", i, SU[i % 2], i))
    go = OPT.get("go", 24)
    ev[go - 2].append(("dma", 9, SU[1])); ev[go - 1].append(("dma", 10, SU[0]))
    ev[go].append(("own0", 0)); ev[go + 1].append(("own0", 1))
    ev[go + 1].append(("tr", 9, SU[1], 0)); ev[go + 2].append(("tr", 10, SU[0], 1))
    ev[go + 3].append(("dma", 12, SU[1])); ev[go + 4].append(("dma", 11, SU[0]))
    RAW = {11: SU[0], 12: SU[1], 13: KU[29 % NR], 14: KU[30 % NR], 15: VU[29 % NR]}
    ev[29].append(("dma", 13, RAW[13])); ev[30] += [("dma", 14, RAW[14]), ("dma", 15, RAW[15])]
    gp = OPT.get("gp", 27)
    ev[gp - 3].append(("mode",))
    ev[gp].append(("pub",)); ev[gp + 2].append(("flag",))
    ev[29].append(("prepoll",)); ev[30].append(("try1",))
    for g in range(32):
        need = [f"W{e[1]}" for e in ev[g] if e[0] == "tr"] + ["ST" for e in ev[g] if e[0] == "flag"] + ["M" for e in ev[g] if e[0] == "pub"] + ["PL" for e in ev[g] if e[0] == "try1"]
        vm.wait(f"K{g+1}", f"V{g}", *need)
        A("s_waitcnt lgkmcnt(0)\ns_barrier")
        tr(A, g)
        if OPT.get("trace") == 1 and g < 31: A(f"s_memtime s[94:95]\ns_waitcnt lgkmcnt(0)\nv_writelane_b32 v{TRV}, s94, {32+g}")
        for e in ev[g]:
            if e[0] == "dma" and g < 29 and not OPT.get("nobg"): dma_blk(e[1], e[2])
            if e[0] == "mode": mode_load(A, MD, PA); vm.issued("M")
            if e[0] == "pub":
                mode_eval(A, MD)
                slot_addr(A, HT, *UA)
                fr = [OBUF + 4 * (s % 6) for s in range(8)]
                rdo = lambda s: f"ds_read_b128 {r4(fr[s])}, v{HT} offset:{s*1024}"
                pub_stores(A, fr, 0, "LH_pub", pre={0: [rdo(s) for s in range(6)], 6: [rdo(6), rdo(7)]})
                vm.issued("ST", 8)
            if e[0] == "flag": pub_flag(A, 0, "LH_fl", OBUF); vm.issued("F")
            if e[0] == "prepoll":
                A(f"s_mov_b64 exec, 0xfff\nbuffer_load_dword v{PV_}, v{PA}, s[{SWS}:{SWS+3}], 0 offen sc1 ; NOTRACK\ns_mov_b64 exec, -1"); vm.issued("PL")
            if e[0] == "try1":
                A(f"s_mov_b64 exec, 0xfff\nv_cmp_ne_u32 vcc, s{S_NON}, v{PV_}\ns_mov_b64 exec, -1\ns_mov_b32 s{S_RET}, 0\ns_cbranch_vccnz LH_nr")
                A(f"s_mov_b32 s{S_RET}, 1\nLH_nr:")
        dma_kv("K", g + NR)
        if g + NR - 1 > 2: dma_kv("V", g + NR - 1)
        for e in ev[g]:
            if e[0] == "dma" and g >= 29: dma_blk(e[1], e[2])
        if g == 30:
            A(f"s_cmp_eq_u32 s{S_RET}, 0\ns_cbranch_scc1 LH_n1")
            dma_peer(A, 1, 0, *UA)
            A("LH_n1:")
        if g == 0:
            q_convert(A)
            slot_addr(A, T, *UA)
            for s in range(8): A(f"ds_write_b128 v{T}, {r4(Q+4*s)} offset:{s*1024}")
            peer_setup(A, PA)
            for j in range(4): A(f"v_mov_b32 v{HKD+j}, v{KD+j}")
            for j in range(2): A(f"v_mov_b32 v{HVD+j}, v{VD+j}\nv_mov_b32 v{HWOD+j}, v{WOD+j}")
            regs.update(KD=HKD, VD=HVD)
            A(f"s_lshl_b32 s{S_T0}, s{S_W4}, 6\nv_xor_b32 v{WTR[0][0]}, s{S_T0}, v{TRB}\nv_xor_b32 v{WTR[1][0]}, 32, v{WTR[0][0]}\nv_mov_b32 v{OB3}, v{OST}")
            for i in (1, 2): A(f"v_add_u32 v{WTR[0][i]}, {i*49152}, v{WTR[0][0]}\nv_add_u32 v{WTR[1][i]}, {i*49152}, v{WTR[1][0]}\nv_add_u32 v{OB3+i}, {i*49152}, v{OST}")
            A(f"s_bfe_u32 s{S_T2}, s2, 0x20003")
            for d in range(4):
                A(f"s_add_u32 s{S_T0}, s{S_T2}, {d}\ns_and_b32 s{S_T0}, s{S_T0}, 3\ns_lshl_b32 s{S_T0}, s{S_T0}, 1\ns_lshl_b32 s{S_T1}, s{S_HG}, 3\ns_add_u32 s{S_T0}, s{S_T0}, s{S_T1}")
                A(f"s_lshl_b32 s{S_T0}, s{S_T0}, 17\ns_lshl_b32 s{S_T1}, s{S_T2}, 8\ns_add_u32 s{S_T0}, s{S_T0}, s{S_T1}\ns_lshl_b32 s{S_T1}, s{S_W4}, 14\ns_add_u32 s{S_HK+d}, s{S_T0}, s{S_T1}")
        for e in ev[g]:
            if e[0] == "own0": compute(0, *UA, half=e[1])
            if e[0] == "tr":
                for x in tr_blk(e[1], e[2], e[3]): A(x)
    A(f"s_cmp_lg_u32 s{S_RET}, 0\ns_cbranch_scc1 LH_p0d")
    poll_loop(A, "LH_p0", 0xfff, 0, PV_, PA)
    dma_peer(A, 1, 0, *UA)
    A("LH_p0d:\ns_waitcnt vmcnt(0) lgkmcnt(0)")
    tr(A, 52, 2)
    A("s_barrier")
    tr(A, 53, 2)
    def bar(i):
        A(f"s_waitcnt lgkmcnt(0)")
        tr(A, 30 + 2 * i, 2)
        A("s_barrier")
        tr(A, 31 + 2 * i, 2)
    compute(1, *UA, extra=tr_blk(11, RAW[11], 2) + tr_blk(12, RAW[12], 3))
    bar(1)
    compute(4, *O1U, extra=tr_blk(13, RAW[13], 8) + tr_blk(14, RAW[14], 0))
    bar(2)
    compute(2, *UA, extra=tr_blk(15, RAW[15], 4))
    compute(3, *UC)
    bar(3)
    compute(5, *O1U)
    compute(6, *UD)
    bar(4)
    compute(7, *UA)
    tr(A, 56, 2)
    X0, X1, X2 = 2, 3, 4
    A(f"s_bfe_u32 s{S_T2}, s2, 0x20003\ns_lshl_b32 s{S_T3}, s{S_B}, 2\ns_add_u32 s{S_T3}, s{S_T3}, s{S_T2}")
    for qi in range(1, 4):
        A(f"s_xor_b32 s{S_T0}, s{S_HG}, {qi}\ns_lshl_b32 s{S_T1}, s{S_T3}, 2\ns_add_u32 s{S_T0}, s{S_T0}, s{S_T1}\ns_lshl_b32 s{S_T0}, s{S_T0}, 2\ns_add_u32 s{S_T0}, s{S_T0}, s{S_HG}")
        A(f"s_lshl_b32 s{S_T0}, s{S_T0}, 2\ns_add_u32 s{S_T0}, s{S_T0}, s{S_W4}\ns_lshl_b32 s{S_T0}, s{S_T0}, 12\ns_add_u32 s{S_T0}, s{S_T0}, {PART_OFF}")
        for g in range(4):
            A(f"buffer_store_dwordx4 {r4(ACC+16*qi+4*g)}, v{OST}, s[{SWS}:{SWS+3}], s{S_T0} offen offset:{g*1024} sc1")
    A(f"v_add_u32 v{X0}, 1, v{L}\nv_xor_b32 v{X0}, s{S_HG}, v{X0}")
    A(f"s_lshl_b32 s{S_T0}, s{S_T3}, 9\ns_add_u32 s{S_T0}, s{S_T0}, {FP_OFF}\ns_lshl_b32 s{S_T1}, s{S_W4}, 2\ns_add_u32 s{S_T0}, s{S_T0}, s{S_T1}")
    A(f"s_lshl_b32 s{S_T1}, s{S_HG}, 4\ns_add_u32 s{S_T1}, s{S_T1}, s{S_T0}\nv_lshlrev_b32 v{X1}, 7, v{X0}\nv_add_u32 v{X1}, s{S_T1}, v{X1}")
    A(f"s_lshl_b32 s{S_T1}, s{S_HG}, 7\ns_add_u32 s{S_T1}, s{S_T1}, s{S_T0}\nv_lshlrev_b32 v{PA}, 4, v{X0}\nv_add_u32 v{PA}, s{S_T1}, v{PA}")
    A(f"v_mov_b32 v{X2}, s{S_NON}")
    A(f"s_waitcnt vmcnt(0)\ns_mov_b64 exec, 7\nbuffer_store_dword v{X2}, v{X1}, s[{SWS}:{SWS+3}], 0 offen sc1\ns_mov_b64 exec, -1")
    tr(A, 57, 2)
    poll_loop(A, "LH_p2", 7, 0, PV_, PA)
    tr(A, 58, 2)
    for qi in range(1, 4):
        A(f"s_xor_b32 s{S_T0}, s{S_HG}, {qi}\ns_lshl_b32 s{S_T1}, s{S_T3}, 2\ns_add_u32 s{S_T1}, s{S_T1}, s{S_HG}\ns_lshl_b32 s{S_T1}, s{S_T1}, 2\ns_add_u32 s{S_T0}, s{S_T0}, s{S_T1}")
        A(f"s_lshl_b32 s{S_T0}, s{S_T0}, 2\ns_add_u32 s{S_T0}, s{S_T0}, s{S_W4}\ns_lshl_b32 s{S_T0}, s{S_T0}, 12\ns_add_u32 s{S_T0}, s{S_T0}, {PART_OFF}")
        for g in range(4):
            A(f"buffer_load_dwordx4 {r4(BP+16*qi+4*g)}, v{OST}, s[{SWS}:{SWS+3}], s{S_T0} offen offset:{g*1024} sc1")
    A(f"v_and_b32 v{X0}, 15, v{L}\nv_lshlrev_b32 v{X0}, 10, v{X0}\nv_lshrrev_b32 v{X1}, 4, v{L}\nv_lshl_add_u32 v{X0}, v{X1}, 4, v{X0}")
    A(f"s_lshl_b32 s{S_T0}, s{S_B}, 17\ns_lshl_b32 s{S_T1}, s{S_HG}, 15\ns_add_u32 s{S_T0}, s{S_T0}, s{S_T1}\ns_lshl_b32 s{S_T1}, s{S_T2}, 8\ns_add_u32 s{S_T0}, s{S_T0}, s{S_T1}\ns_lshl_b32 s{S_T1}, s{S_W4}, 6\ns_add_u32 s{S_T0}, s{S_T0}, s{S_T1}\ns_add_u32 s{S_T1}, s{S_T0}, 16384")
    for qi in range(1, 4):
        for r in range(16): A(f"v_add_f32 v{ACC+r}, v{ACC+r}, v{BP+16*qi+r}")
    for j in range(8): A(f"v_cvt_pk_bf16_f32 v{OBUF+j}, v{ACC+2*j}, v{ACC+2*j+1}")
    for u in range(2): swaps(A, OBUF + 4 * u, OBUF + 4 * u + 2)
    A(f"buffer_store_dwordx4 {r4(OBUF)}, v{X0}, s[{SOUT}:{SOUT+3}], s{S_T0} offen")
    A(f"buffer_store_dwordx4 {r4(OBUF+4)}, v{X0}, s[{SOUT}:{SOUT+3}], s{S_T1} offen")
    if OPT.get("trace"): A("s_waitcnt vmcnt(0)")
    tr(A, 59, 2)
    A(f"s_or_b32 s{S_T0}, s2, s{S_W4}\ns_cmp_lg_u32 s{S_T0}, 0\ns_cbranch_scc1 LH_fin")
    A(f"v_lshlrev_b32 v{X0}, 7, v{L}\ns_and_b32 s{S_T2}, s{S_NON}, 0xfffffff\nLH_p3:")
    for i in range(4):
        A(f"s_mov_b32 s{S_T0}, {FO_OFF + i*8192}\nbuffer_load_dword v{OBUF+8+i}, v{X0}, s[{SWS}:{SWS+3}], s{S_T0} offen offset:32 sc1")
    A(f"s_mov_b64 s[{S_T0}:{S_T1}], 0")
    for i in range(4):
        A(f"v_lshrrev_b32 v{OBUF+8+i}, 4, v{OBUF+8+i}\nv_cmp_ne_u32 vcc, s{S_T2}, v{OBUF+8+i}\ns_or_b64 s[{S_T0}:{S_T1}], s[{S_T0}:{S_T1}], vcc")
    A(f"s_cmp_lg_u64 s[{S_T0}:{S_T1}], 0\ns_cbranch_scc1 LH_p3\nv_mov_b32 v{X0}, 0")
    A(f"v_mov_b32 v{X1}, s{S_NON}\ns_mov_b32 s{S_T0}, {EP_OFF}\ns_mov_b64 exec, 1\nbuffer_store_dword v{X1}, v{X0}, s[{SWS}:{SWS+3}], s{S_T0} offen sc1\ns_mov_b64 exec, -1")
    A("LH_fin:")
    tr_store(A, "LTRH")
    A("L_end:\ns_endpgm")
    A(f"L_ovf:\nv_mov_b32 v3, 1\ns_mov_b64 exec, 1\nbuffer_atomic_add v3, v4, s[8:11], 0 offen offset:16 sc0 sc1\ns_mov_b64 exec, -1\ns_waitcnt vmcnt(0)\nv_readfirstlane_b32 s{S_T0}, v3")
    A(f"v_lshlrev_b32 v4, 5, v1\nL_ovf1:\nbuffer_load_dword v3, v4, s[8:11], 0 offen sc1\ns_waitcnt vmcnt(0)\ns_mov_b32 s{S_T3}, 0")
    for x in range(8): A(f"v_readlane_b32 s{12+x}, v3, {x}\ns_nop 3\ns_add_u32 s{S_T3}, s{S_T3}, s{12+x}")
    A(f"s_cmp_lg_u32 s{S_T3}, 256\ns_cbranch_scc1 L_ovf1")
    for x in range(8):
        A(f"s_min_u32 s{S_T1}, s{12+x}, 32\ns_sub_u32 s{S_T3}, 32, s{S_T1}\ns_mov_b32 s{S_T2}, {x}\ns_add_u32 s{S_T1}, s{S_T1}, s{S_T0}")
        A(f"s_cmp_lt_u32 s{S_T0}, s{S_T3}\ns_cbranch_scc1 L_idok\ns_sub_u32 s{S_T0}, s{S_T0}, s{S_T3}")
    A("s_endpgm")

def build():
    A1 = Asm(); vm = gen_prologue(A1); gen_A(A1, vm); gen_H(A1, vm)
    t = header(["; @launch grid=(256,1,1) block=(512,1,1) lds=163840"])
    t += kstart(KN) + A1.finish() + RODATA + kdesc(KN)
    return t

if __name__ == "__main__":
    OPT.update(kv="5:K0,6:V0+K1,7:V1", hkv="K2+V2")
    for a in sys.argv[2:]:
        k, v = a.split("=")
        try: OPT[k] = int(v)
        except ValueError: OPT[k] = v
    open(sys.argv[1], "w").write(build())
```
